```python
import torch

def _softmax(x, axis=-1):
    return torch.softmax(x, dim=axis)
def _gelu(x):
    return torch.nn.functional.gelu(x, approximate="tanh")
def _silu(x):
    return torch.nn.functional.silu(x)
def _sigmoid(x):
    return torch.sigmoid(x)
def _layernorm(x, axis=-1, eps=1e-5):
    m = x.mean(dim=axis, keepdim=True)
    v = x.var(dim=axis, keepdim=True, unbiased=False)
    return (x - m) / torch.sqrt(v + eps)
def _scatter_add(tgt, idx, src, axis=0):
    return tgt.clone().index_add_(axis, idx, src)
def _segment_sum(src, seg, n):
    out = torch.zeros((n,) + src.shape[1:], dtype=src.dtype)
    return out.index_add_(0, seg, src)
def _pad(x, pw):
    flat = tuple(v for pair in reversed(pw) for v in pair)
    return torch.nn.functional.pad(x, flat)

kernel_name = 'parallel_sum__ssm_conv_h3__dense_activation_silu__prompt'

def setup_inputs():

    _w = (lambda a: (lambda t: t.to(torch.bfloat16) if t.is_floating_point() else t)(torch.as_tensor(a)))
    def _A_setup():
        B, S, D = 1, 2048, 512
        ks = 4
        return {
            "q": _w((lambda *s: torch.randn(*s, dtype=torch.bfloat16) * 0.05)(B, S, D)),
            "k": _w((lambda *s: torch.randn(*s, dtype=torch.bfloat16) * 0.2)(B, S, D)),
            "v": _w((lambda *s: torch.randn(*s, dtype=torch.bfloat16) * 0.2)(B, S, D)),
            "shift_k": _w((lambda *s: torch.randn(*s, dtype=torch.bfloat16) * 0.2)(D, ks) * 0.5),
            "ssm_k": _w((lambda *s: torch.randn(*s, dtype=torch.bfloat16) * 0.8)(D, S) * (1.0 / S ** 0.5)),
            "ssm_D": _w((lambda *s: torch.randn(*s, dtype=torch.bfloat16) * 0.2)(D)),
        }
    _A_in = _A_setup()

    def _B_setup():
        B, S, D, F = 1, 2048, 512, 1792
        return {
            "x": _w((lambda *s: torch.randn(*s, dtype=torch.bfloat16) * 0.05)(B, S, D)),
            "w1": _w((lambda *s: torch.randn(*s, dtype=torch.bfloat16) * 0.8)(D, F) * (D ** -0.5)),
            "w2": _w((lambda *s: torch.randn(*s, dtype=torch.bfloat16) * 0.1)(F, D) * (F ** -0.5)),
        }
    _B_in = _B_setup()

    return {
        "A_q": _A_in["q"],
        "A_k": _A_in["k"],
        "A_v": _A_in["v"],
        "A_shift_k": _A_in["shift_k"],
        "A_ssm_k": _A_in["ssm_k"],
        "A_ssm_D": _A_in["ssm_D"],
        "B_x": _B_in["x"],
        "B_w1": _B_in["w1"],
        "B_w2": _B_in["w2"],
    }

def reference(A_q, A_k, A_v, A_shift_k, A_ssm_k, A_ssm_D, B_x, B_w1, B_w2):
    def _A_ref(q, k, v, shift_k, ssm_k, ssm_D):
        B, S, D = q.shape
        ks = shift_k.shape[-1]
        k_pad = _pad(k, ((0, 0), (ks - 1, 0), (0, 0)))
        k_shift = torch.zeros_like(k)
        for t in range(ks):
            k_shift = k_shift + k_pad[:, t:t + S, :] * shift_k[:, ks - 1 - t][None, None, :]
        kv = k_shift * v
        L = 2 * S
        kv_pad = _pad(kv, ((0, 0), (0, S), (0, 0)))
        kf_pad = _pad(ssm_k, ((0, 0), (0, S)))
        kv_f = (lambda x, axes=(-2,-1): torch.fft.rfft2(x.float(), dim=axes))(kv_pad[:, None, :, :], axes=(1, 2))
        kf_f = (lambda x, axes=(-2,-1): torch.fft.rfft2(x.float(), dim=axes))(kf_pad[:, None, :], axes=(1, 2))
        kf_f = (lambda x, *d: x.permute(*d))(kf_f, 1, 2, 0)
        y_f = kv_f * kf_f[None, :, :, :]
        y = (lambda x, s, axes=(-2,-1): torch.fft.irfft2(x, s=s, dim=axes).to(torch.bfloat16))(y_f, (1, L), axes=(1, 2))[:, 0, :S, :]
        y = y + kv * ssm_D[None, None, :]
        return q * y

    def _B_ref(x, w1, w2):
        h = torch.einsum("bsd,df->bsf", x, w1)
        h = _silu(h)
        out = torch.einsum("bsf,fd->bsd", h, w2)
        return out

    x = A_q
    xn = _layernorm(x, axis=-1)
    return x + _A_ref(xn, A_k, A_v, A_shift_k, A_ssm_k, A_ssm_D) + _B_ref(xn, B_w1, B_w2)
```

```python
class Prog:
    def __init__(self):
        self.L = []
        self.vm = []
    def e(self, s):
        for l in s.strip("\n").split("\n"):
            self.L.append("    " + l.strip())
    def label(self, n):
        self.L.append(n + ":")
    def c(self, s):
        self.L.append("    ; " + s)
    def vmem(self, s, tag="x"):
        self.e(s); self.vm.append(tag)
    def wait_vm(self, tag, extra=""):
        idx = [i for i, t in enumerate(self.vm) if t == tag]
        if not idx:
            return
        last = idx[-1]
        n = len(self.vm) - 1 - last
        assert n <= 63, n
        self.e(f"s_waitcnt vmcnt({n}){(' ' + extra) if extra else ''}")
        self.vm = self.vm[last + 1:]
    def wait_vm_all(self):
        self.e("s_waitcnt vmcnt(0)"); self.vm = []
    def text(self):
        return "\n".join(self.L) + "\n"

def vr(b, n=1):
    return f"v{b}" if n == 1 else f"v[{b}:{b+n-1}]"
def sr(b, n=1):
    return f"s{b}" if n == 1 else f"s[{b}:{b+n-1}]"

def srd(p, dst, base_lo, size, add=None):
    if add is None:
        p.e(f"s_mov_b32 s{dst}, s{base_lo}")
        p.e(f"s_mov_b32 s{dst+1}, s{base_lo+1}")
    else:
        p.e(f"s_add_u32 s{dst}, s{base_lo}, {add}")
        p.e(f"s_addc_u32 s{dst+1}, s{base_lo+1}, 0")
    p.e(f"s_mov_b32 s{dst+2}, {size}")
    p.e(f"s_mov_b32 s{dst+3}, 0x00020000")

def kernel(name, body, vgpr, sgpr=96, agpr=0):
    acc = (vgpr + 3) // 4 * 4
    tot = acc + agpr if agpr else vgpr
    head = f""".text
.globl {name}
.p2align 8
.type {name},@function
{name}:
"""
    tail = f"""    s_endpgm
"""
    desc = f""".section .rodata,"a"
.p2align 6
.amdhsa_kernel {name}
  .amdhsa_next_free_vgpr {tot}
  .amdhsa_next_free_sgpr {sgpr}
  .amdhsa_accum_offset {acc}
  .amdhsa_group_segment_fixed_size 0
  .amdhsa_kernarg_size 96
  .amdhsa_user_sgpr_count 2
  .amdhsa_user_sgpr_kernarg_segment_ptr 1
  .amdhsa_system_sgpr_workgroup_id_x 1
  .amdhsa_float_denorm_mode_32 3
.end_amdhsa_kernel
"""
    return head + body + tail, desc
```

```python
import sys
from asmlib import *

NAME = "parallel_sum__ssm_conv_h3__dense_activation_silu__prompt"
WS_STATS = 0
WS_KVR = 0x10000
WS_YT = WS_KVR + 0x200000
WS_H = WS_YT + 0x200000
H_BYTES = 128 * 57344
KA = dict(q=0, k=8, v=16, shift=24, ssmk=32, ssmD=40, bx=48, w1=56, w2=64, out=72, dbg=80, ws=88)

def allreduce(p, regs, tmp):
    for mod in ("quad_perm:[1,0,3,2]", "quad_perm:[2,3,0,1]", "row_half_mirror", "row_mirror"):
        p.e("s_nop 1")
        for r in regs:
            p.e(f"v_add_f32_dpp v{r}, v{r}, v{r} {mod} row_mask:0xf bank_mask:0xf")
    for sw in ("v_permlane16_swap_b32", "v_permlane32_swap_b32"):
        for r, t in zip(regs, tmp):
            p.e(f"v_mov_b32 v{t}, v{r}")
        p.e("s_nop 1")
        for r, t in zip(regs, tmp):
            p.e(f"{sw} v{t}, v{r}")
        p.e("s_nop 1")
        for r, t in zip(regs, tmp):
            p.e(f"v_add_f32 v{r}, v{r}, v{t}")

def rne_bf16(p, dst, src):
    p.e(f"v_cvt_pk_bf16_f32 v{dst}, v{src}, v{src}")
    p.e(f"v_and_b32 v{dst}, 0xffff0000, v{dst}")

def gen_prep(name):
    p = Prog()
    p.e("s_cmp_ge_u32 s2, 256")
    p.e(f"s_cbranch_scc1 {name}_end")
    p.e("s_load_dwordx2 s[4:5], s[0:1], 0")
    p.e("s_load_dwordx4 s[8:11], s[0:1], 8")
    p.e("s_load_dwordx2 s[12:13], s[0:1], 24")
    p.e("s_load_dwordx2 s[14:15], s[0:1], 88")
    p.e("v_and_b32 v1, 7, v0")
    p.e("v_lshrrev_b32 v2, 3, v0")
    p.e("s_lshr_b32 s40, s2, 3")
    p.e("s_and_b32 s41, s2, 7")
    p.e("s_lshl_b32 s42, s40, 16")
    p.e("s_lshl_b32 s43, s41, 7")
    p.e("s_add_u32 s42, s42, s43")
    p.e("v_lshlrev_b32 v3, 11, v2")
    p.e("v_lshl_add_u32 v3, v1, 4, v3")
    p.e("v_add_u32 v3, s42, v3")
    p.e("v_add_u32 v4, 0xfffff400, v3")
    p.e("v_add_u32 v5, 0xfffff800, v3")
    p.e("v_add_u32 v6, 0xfffffc00, v3")
    p.e("s_lshl_b32 s43, s41, 9")
    p.e("v_lshlrev_b32 v7, 6, v1")
    p.e("v_add_u32 v7, s43, v7")
    p.e("v_lshrrev_b32 v60, 6, v0")
    p.e("v_and_b32 v61, 63, v0")
    p.e("v_lshlrev_b32 v62, 11, v60")
    p.e("v_lshl_add_u32 v62, v61, 4, v62")
    p.e("s_lshl_b32 s44, s2, 13")
    p.e("v_add_u32 v62, s44, v62")
    p.e("s_waitcnt lgkmcnt(0)")
    srd(p, 16, 4, 2097152)
    srd(p, 20, 8, 2097152)
    srd(p, 24, 10, 2097152)
    srd(p, 28, 12, 4096)
    srd(p, 32, 14, 2097152, add=WS_KVR)
    srd(p, 36, 14, 16384)
    KR, VR, SK, XR = 8, 28, 36, 52
    p.vmem(f"buffer_load_dwordx4 v[{XR}:{XR+3}], v62, s[16:19], 0 offen", "x")
    p.vmem(f"buffer_load_dwordx4 v[{XR+4}:{XR+7}], v62, s[16:19], 0 offen offset:1024", "x")
    p.vmem(f"buffer_load_dwordx4 v[{KR}:{KR+3}], v4, s[20:23], 0 offen", "k")
    p.vmem(f"buffer_load_dwordx4 v[{KR+4}:{KR+7}], v5, s[20:23], 0 offen", "k")
    p.vmem(f"buffer_load_dwordx4 v[{KR+8}:{KR+11}], v6, s[20:23], 0 offen", "k")
    p.vmem(f"buffer_load_dwordx4 v[{KR+12}:{KR+15}], v3, s[20:23], 0 offen", "k")
    p.vmem(f"buffer_load_dwordx4 v[{KR+16}:{KR+19}], v3, s[20:23], 0 offen offset:1024", "k")
    p.vmem(f"buffer_load_dwordx4 v[{VR}:{VR+3}], v3, s[24:27], 0 offen", "k")
    p.vmem(f"buffer_load_dwordx4 v[{VR+4}:{VR+7}], v3, s[24:27], 0 offen offset:1024", "k")
    for j in range(4):
        p.vmem(f"buffer_load_dwordx4 v[{SK+4*j}:{SK+4*j+3}], v7, s[28:31], 0 offen offset:{16*j}", "k")
    p.wait_vm("x")
    E = 64
    for rw in range(2):
        for j in range(4):
            p.e(f"v_lshlrev_b32 v{E+8*rw+2*j}, 16, v{XR+4*rw+j}")
            p.e(f"v_and_b32 v{E+8*rw+2*j+1}, 0xffff0000, v{XR+4*rw+j}")
    S = 80
    for rw in range(2):
        b = E + 8*rw
        p.e(f"v_pk_add_f32 v[{S+2*rw}:{S+2*rw+1}], v[{b}:{b+1}], v[{b+2}:{b+3}]")
        p.e(f"v_pk_add_f32 v[{S+4+2*rw}:{S+4+2*rw+1}], v[{b+4}:{b+5}], v[{b+6}:{b+7}]")
    for rw in range(2):
        p.e(f"v_pk_add_f32 v[{S+2*rw}:{S+2*rw+1}], v[{S+2*rw}:{S+2*rw+1}], v[{S+4+2*rw}:{S+4+2*rw+1}]")
    for rw in range(2):
        p.e(f"v_add_f32 v{S+2*rw}, v{S+2*rw}, v{S+2*rw+1}")
    allreduce(p, [S, S+2], [S+4, S+5])
    for rw in range(2):
        p.e(f"v_mul_f32 v{S+2*rw}, 0x3b000000, v{S+2*rw}")
    for rw in range(2):
        b = E + 8*rw
        for j in range(4):
            p.e(f"v_pk_add_f32 v[{b+2*j}:{b+2*j+1}], v[{b+2*j}:{b+2*j+1}], v[{S+2*rw}:{S+2*rw+1}] op_sel_hi:[1,0] neg_lo:[0,1] neg_hi:[0,1]")
    Q = 88
    for rw in range(2):
        b = E + 8*rw
        p.e(f"v_pk_mul_f32 v[{Q+2*rw}:{Q+2*rw+1}], v[{b}:{b+1}], v[{b}:{b+1}]")
        for j in range(1,4):
            p.e(f"v_pk_fma_f32 v[{Q+2*rw}:{Q+2*rw+1}], v[{b+2*j}:{b+2*j+1}], v[{b+2*j}:{b+2*j+1}], v[{Q+2*rw}:{Q+2*rw+1}]")
    for rw in range(2):
        p.e(f"v_add_f32 v{Q+2*rw}, v{Q+2*rw}, v{Q+2*rw+1}")
    allreduce(p, [Q, Q+2], [S+4, S+5])
    O = 92
    for rw in range(2):
        p.e(f"v_mul_f32 v{Q+2*rw}, 0x3b000000, v{Q+2*rw}")
        rne_bf16(p, O+2*rw, S+2*rw)
        rne_bf16(p, Q+2*rw, Q+2*rw)
        p.e(f"v_add_f32 v{Q+2*rw}, 0x3727c5ac, v{Q+2*rw}")
        rne_bf16(p, Q+2*rw, Q+2*rw)
        p.e(f"v_sqrt_f32 v{Q+2*rw}, v{Q+2*rw}")
        p.e("s_nop 0")
        rne_bf16(p, O+2*rw+1, Q+2*rw)
    p.e("v_lshlrev_b32 v63, 4, v60")
    p.e("s_lshl_b32 s45, s2, 6")
    p.e("s_mov_b64 exec, 1")
    p.vmem(f"buffer_store_dwordx4 v[{O}:{O+3}], v63, s[36:39], s45 offen", "st")
    p.e("s_mov_b64 exec, -1")
    p.wait_vm("k")
    T, W, VV, A, B, R = 64, 74, 82, 86, 88, 96
    for q in range(4):
        for j in range(5):
            p.e(f"v_lshlrev_b32 v{T+2*j}, 16, v{KR+4*j+q}")
            p.e(f"v_and_b32 v{T+2*j+1}, 0xffff0000, v{KR+4*j+q}")
        p.e(f"v_lshlrev_b32 v{W+0}, 16, v{SK+4*q}")
        p.e(f"v_lshlrev_b32 v{W+1}, 16, v{SK+4*q+2}")
        p.e(f"v_and_b32 v{W+2}, 0xffff0000, v{SK+4*q}")
        p.e(f"v_and_b32 v{W+3}, 0xffff0000, v{SK+4*q+2}")
        p.e(f"v_lshlrev_b32 v{W+4}, 16, v{SK+4*q+1}")
        p.e(f"v_lshlrev_b32 v{W+5}, 16, v{SK+4*q+3}")
        p.e(f"v_and_b32 v{W+6}, 0xffff0000, v{SK+4*q+1}")
        p.e(f"v_and_b32 v{W+7}, 0xffff0000, v{SK+4*q+3}")
        for j in range(2):
            p.e(f"v_lshlrev_b32 v{VV+2*j}, 16, v{VR+4*j+q}")
            p.e(f"v_and_b32 v{VV+2*j+1}, 0xffff0000, v{VR+4*j+q}")
        def pr(b): return f"v[{b}:{b+1}]"
        p.e(f"v_pk_mul_f32 {pr(A)}, {pr(T+6)}, {pr(W)}")
        p.e(f"v_pk_mul_f32 {pr(B)}, {pr(T+8)}, {pr(W)}")
        p.e(f"v_pk_fma_f32 {pr(A)}, {pr(T+4)}, {pr(W+2)}, {pr(A)}")
        p.e(f"v_pk_fma_f32 {pr(B)}, {pr(T+6)}, {pr(W+2)}, {pr(B)}")
        p.e(f"v_pk_fma_f32 {pr(A)}, {pr(T+2)}, {pr(W+4)}, {pr(A)}")
        p.e(f"v_pk_fma_f32 {pr(B)}, {pr(T+4)}, {pr(W+4)}, {pr(B)}")
        p.e(f"v_pk_fma_f32 {pr(A)}, {pr(T+0)}, {pr(W+6)}, {pr(A)}")
        p.e(f"v_pk_fma_f32 {pr(B)}, {pr(T+2)}, {pr(W+6)}, {pr(B)}")
        p.e(f"v_pk_mul_f32 {pr(A)}, {pr(A)}, {pr(VV)}")
        p.e(f"v_pk_mul_f32 {pr(B)}, {pr(B)}, {pr(VV+2)}")
        p.e(f"v_cvt_pk_bf16_f32 v{R+2*q}, v{B}, v{A}")
        p.e(f"v_cvt_pk_bf16_f32 v{R+2*q+1}, v{B+1}, v{A+1}")
    p.e("v_sub_u32 v4, 31, v2")
    p.e("v_lshlrev_b32 v5, 2, v1")
    p.e("v_xor_b32 v4, v4, v5")
    p.e("v_lshlrev_b32 v4, 2, v4")
    p.e("v_lshl_add_u32 v4, v1, 10, v4")
    for i in range(8):
        p.e(f"ds_write_b32 v4, v{R+i} offset:{128*i}")
    p.e("v_lshrrev_b32 v5, 3, v2")
    p.e("v_xor_b32 v5, v5, v1")
    p.e("v_lshlrev_b32 v5, 4, v5")
    p.e("v_lshl_add_u32 v5, v2, 7, v5")
    p.e("v_xor_b32 v6, 64, v5")
    p.e("v_lshlrev_b32 v7, 12, v2")
    p.e("v_lshl_add_u32 v7, v1, 4, v7")
    p.e("s_lshl_b32 s46, s41, 18")
    p.e("s_lshl_b32 s47, s40, 7")
    p.e("s_sub_u32 s47, 3968, s47")
    p.e("s_add_u32 s46, s46, s47")
    p.e("s_add_u32 s47, s46, 131072")
    p.e("s_waitcnt lgkmcnt(0)")
    p.e("s_barrier")
    p.e("ds_read_b128 v[8:11], v5")
    p.e("ds_read_b128 v[12:15], v6 offset:4096")
    p.e("s_waitcnt lgkmcnt(1)")
    p.e("buffer_store_dwordx4 v[8:11], v7, s[32:35], s46 offen")
    p.e("s_waitcnt lgkmcnt(0)")
    p.e("buffer_store_dwordx4 v[12:15], v7, s[32:35], s47 offen")
    p.e("s_waitcnt vmcnt(0)")
    p.label(f"{name}_end")
    return kernel(name, p.text(), vgpr=112, sgpr=64)

KV0, H0 = 0, 8192
SLOT0, SLOTSZ = 40960, 30720

def gen_g1(name):
    p = Prog()
    p.e("s_cmp_ge_u32 s2, 256")
    p.e(f"s_cbranch_scc1 {name}_end")
    p.e("s_load_dwordx2 s[4:5], s[0:1], 0")
    p.e("s_load_dwordx4 s[8:11], s[0:1], 32")
    p.e("s_load_dwordx2 s[12:13], s[0:1], 56")
    p.e("s_load_dwordx2 s[14:15], s[0:1], 88")
    p.e("v_lshrrev_b32 v1, 6, v0")
    p.e("v_and_b32 v2, 63, v0")
    p.e("v_readfirstlane_b32 s3, v1")
    p.e("s_and_b32 s40, s2, 7")
    p.e("s_lshr_b32 s41, s2, 3")
    p.e("s_and_b32 s42, s40, 3")
    p.e("s_lshl_b32 s42, s42, 2")
    p.e("s_and_b32 s43, s41, 3")
    p.e("s_add_u32 s42, s42, s43")
    p.e("s_lshr_b32 s43, s40, 2")
    p.e("s_lshl_b32 s43, s43, 3")
    p.e("s_lshr_b32 s44, s41, 2")
    p.e("s_add_u32 s43, s43, s44")
    p.e("v_and_b32 v3, 15, v2")
    p.e("v_lshrrev_b32 v4, 4, v2")
    p.e("s_waitcnt lgkmcnt(0)")
    p.e("s_cmp_ge_u32 s3, 4")
    p.e(f"s_cbranch_scc1 {name}_loader")

    c = p
    srd(c, 16, 14, 16384)
    srd(c, 20, 14, H_BYTES, add=WS_H)
    c.e("s_lshl_b32 s45, s42, 7")
    c.e("s_lshl_b32 s46, s3, 5")
    c.e("s_add_u32 s45, s45, s46")
    c.e("v_add_u32 v5, s45, v3")
    c.e("v_lshlrev_b32 v5, 3, v5")
    ST = 8
    c.vmem(f"buffer_load_dwordx2 v[{ST}:{ST+1}], v5, s[16:19], 0 offen", "st")
    c.vmem(f"buffer_load_dwordx2 v[{ST+2}:{ST+3}], v5, s[16:19], 0 offen offset:128", "st")
    VX0, VX1 = 12, 13
    c.e("v_and_b32 v5, 7, v3")
    c.e("v_xor_b32 v5, v5, v4")
    c.e("v_lshlrev_b32 v5, 4, v5")
    c.e("s_lshl_b32 s46, s3, 5")
    c.e("v_add_u32 v6, s46, v3")
    c.e(f"v_lshl_add_u32 v{VX0}, v6, 7, v5")
    c.e(f"v_add_u32 v{VX0}, {SLOT0}, v{VX0}")
    c.e(f"v_xor_b32 v{VX1}, 64, v{VX0}")
    VW = 14
    c.e("v_lshrrev_b32 v5, 1, v4")
    c.e("v_lshlrev_b32 v5, 4, v5")
    c.e("v_and_b32 v6, 1, v4")
    c.e("v_lshl_add_u32 v5, v6, 2, v5")
    c.e("v_lshrrev_b32 v6, 2, v3")
    c.e("v_add_u32 v5, v5, v6")
    c.e("v_mul_u32_u24 v5, 224, v5")
    c.e("v_and_b32 v6, 3, v3")
    c.e("v_lshl_add_u32 v5, v6, 3, v5")
    c.e(f"v_add_u32 v5, {SLOT0+16384}, v5")
    SFB = 48
    for i in range(7):
        c.e(f"s_lshl_b32 s{SFB+i}, s3, 1")
        c.e(f"s_add_u32 s{SFB+i}, s{SFB+i}, {i}")
        c.e(f"s_cmp_ge_u32 s{SFB+i}, 7")
        c.e(f"s_cselect_b32 s46, 7, 0")
        c.e(f"s_sub_u32 s{SFB+i}, s{SFB+i}, s46")
        c.e(f"s_lshl_b32 s46, s{SFB+i}, 5")
        c.e(f"v_add_u32 v{VW+i}, s46, v5")
    ONES = 24
    for j in range(4):
        c.e(f"v_mov_b32 v{ONES+j}, 0x3f803f80")
    F = [32, 68]
    ACC = 104
    CSA = 160
    for j in range(64):
        c.e(f"v_mov_b32 v{ACC+j}, 0")
    def reads(hs):
        f = F[hs]
        L = []
        vx = VX0 if hs == 0 else VX1
        for tb in range(2):
            L.append(f"ds_read_b128 v[{f+28+4*tb}:{f+28+4*tb+3}], v{vx} offset:{2048*tb}")
        for i in range(7):
            for m in range(2):
                L.append(f"ds_read_b64_tr_b16 v[{f+4*i+2*m}:{f+4*i+2*m+1}], v{VW+i} offset:{7168*hs+1792*m}")
        return L
    def mfmas(hs):
        f = F[hs]
        L = []
        for i in range(7):
            for tb in range(2):
                a = ACC + (2*i+tb)*4
                L.append(f"v_mfma_f32_16x16x32_bf16 v[{a}:{a+3}], v[{f+4*i}:{f+4*i+3}], v[{f+28+4*tb}:{f+28+4*tb+3}], v[{a}:{a+3}]")
            if i < 2:
                a = CSA + 4*i
                L.append(f"v_mfma_f32_16x16x32_bf16 v[{a}:{a+3}], v[{f+4*i}:{f+4*i+3}], v[{ONES}:{ONES+3}], v[{a}:{a+3}]")
        return L
    def interleave(M, R, per=2, extra=()):
        R = list(R); X = list(extra)
        for k, m in enumerate(M):
            c.e(m)
            for _ in range(per):
                if R: c.e(R.pop(0))
            if not R and X and k >= 9:
                for _ in range(2):
                    if X: c.e(X.pop(0))
        assert not R and not X
    c.e("s_barrier")
    for r in reads(0): c.e(r)
    c.e("s_mov_b32 s46, 0")
    c.e(f"s_mov_b32 s56, {(-3*SLOTSZ) & 0xffffffff}")
    c.e(f"s_mov_b32 s57, {SLOTSZ}")
    c.e("s_waitcnt lgkmcnt(0)")
    c.label(f"{name}_g1loop")
    c.e("s_and_b32 s47, s46, 3")
    c.e("s_cmp_eq_u32 s47, 3")
    c.e(f"s_cselect_b32 s47, s56, s57")
    adv = [f"v_add_u32 v{r}, s47, v{r}" for r in [VX0, VX1] + [VW+i for i in range(7)]]
    interleave(mfmas(0), reads(1), extra=adv)
    c.e("s_waitcnt lgkmcnt(0)")
    c.e("s_barrier")
    interleave(mfmas(1), reads(0))
    c.e("s_add_u32 s46, s46, 1")
    c.e("s_cmp_lt_u32 s46, 8")
    c.e("s_waitcnt lgkmcnt(0)")
    c.e(f"s_cbranch_scc1 {name}_g1loop")
    c.e("s_nop 7")
    CSB = SLOT0
    c.e("v_lshlrev_b32 v5, 4, v4")
    c.e("s_mov_b32 exec_lo, 0x00010001")
    c.e("s_mov_b32 exec_hi, 0x00010001")
    for i in range(2):
        c.e(f"s_lshl_b32 s46, s{SFB+i}, 6")
        c.e(f"v_add_u32 v6, s46, v5")
        c.e(f"ds_write_b128 v6, v[{CSA+4*i}:{CSA+4*i+3}] offset:{CSB}")
    c.e("s_mov_b64 exec, -1")
    c.e("s_waitcnt lgkmcnt(0)")
    c.e("s_barrier")
    CS = 32
    for i in range(7):
        c.e(f"s_lshl_b32 s46, s{SFB+i}, 6")
        c.e(f"v_add_u32 v6, s46, v5")
        c.e(f"ds_read_b128 v[{CS+4*i}:{CS+4*i+3}], v6 offset:{CSB}")
    c.wait_vm("st")
    C1 = 60
    for tb in range(2):
        c.e(f"v_rcp_f32 v{C1+2*tb}, v{ST+2*tb+1}")
    c.e("s_nop 0")
    for tb in range(2):
        c.e(f"v_mul_f32 v{C1+2*tb}, 0xbfb8aa3b, v{C1+2*tb}")
    c.e("v_and_b32 v5, 1, v4")
    c.e("v_mul_u32_u24 v5, 57344, v5")
    c.e("v_lshrrev_b32 v6, 1, v4")
    c.e("v_lshl_add_u32 v5, v6, 8, v5")
    c.e("v_lshl_add_u32 v5, v3, 4, v5")
    c.e("s_lshl_b32 s46, s42, 3")
    c.e("s_lshl_b32 s47, s3, 1")
    c.e("s_add_u32 s46, s46, s47")
    c.e("s_mul_i32 s46, s46, 57344")
    c.e("s_mul_i32 s47, s43, 3584")
    c.e("s_add_u32 s46, s46, s47")
    c.e("s_waitcnt lgkmcnt(0)")
    T, Z, P = 64, 72, 80
    for i in range(7):
        chains = [(tb, h) for tb in range(2) for h in range(2)]
        def tz(k): return T + 2*k, Z + 2*k
        for k, (tb, h) in enumerate(chains):
            t, z = tz(k); a = ACC + (2*i+tb)*4 + 2*h
            c.e(f"v_pk_fma_f32 v[{t}:{t+1}], v[{CS+4*i+2*h}:{CS+4*i+2*h+1}], v[{ST+2*tb}:{ST+2*tb+1}], v[{a}:{a+1}] op_sel_hi:[1,0,1] neg_lo:[0,1,0] neg_hi:[0,1,0]")
        for k, (tb, h) in enumerate(chains):
            t, z = tz(k)
            c.e(f"v_pk_mul_f32 v[{z}:{z+1}], v[{t}:{t+1}], v[{C1+2*tb}:{C1+2*tb+1}] op_sel_hi:[1,0]")
        for k in range(4):
            t, z = tz(k)
            c.e(f"v_exp_f32 v{z}, v{z}")
            c.e(f"v_exp_f32 v{z+1}, v{z+1}")
        for k, (tb, h) in enumerate(chains):
            t, z = tz(k)
            c.e(f"v_pk_fma_f32 v[{z}:{z+1}], v[{z}:{z+1}], v[{ST+2*tb}:{ST+2*tb+1}], v[{ST+2*tb}:{ST+2*tb+1}] op_sel:[0,1,1] op_sel_hi:[1,1,1]")
        for k in range(4):
            t, z = tz(k)
            c.e(f"v_rcp_f32 v{z}, v{z}")
            c.e(f"v_rcp_f32 v{z+1}, v{z+1}")
        for k in range(4):
            t, z = tz(k)
            c.e(f"v_pk_mul_f32 v[{t}:{t+1}], v[{t}:{t+1}], v[{z}:{z+1}]")
        q = P + 4*(i % 2)
        for k, (tb, h) in enumerate(chains):
            t, z = tz(k)
            c.e(f"v_cvt_pk_bf16_f32 v{q+2*tb+h}, v{t}, v{t+1}")
        c.e(f"s_lshl_b32 s47, s{SFB+i}, 9")
        c.e(f"s_add_u32 s47, s47, s46")
        c.e(f"v_permlane16_swap_b32 v{q}, v{q+2}")
        c.e(f"v_permlane16_swap_b32 v{q+1}, v{q+3}")
        c.vmem(f"buffer_store_dwordx4 v[{q}:{q+3}], v5, s[20:23], s47 offen", "h")
    c.e("s_waitcnt vmcnt(0)")
    c.e("s_endpgm")

    l = p
    l.vm = []
    l.label(f"{name}_loader")
    l.e("s_sub_u32 s45, s3, 4")
    l.e("s_lshr_b32 s46, s45, 1")
    l.e("s_and_b32 s47, s45, 1")
    l.e("s_lshl_b32 s48, s2, 1")
    l.e("s_add_u32 s48, s48, s46")
    l.e("s_lshl_b32 s49, s48, 12")
    l.e("s_add_u32 s16, s8, s49"); l.e("s_addc_u32 s17, s9, 0"); l.e("s_mov_b32 s18, 4096"); l.e("s_mov_b32 s19, 0x00020000")
    srd(l, 20, 14, 2097152, add=WS_KVR)
    srd(l, 24, 14, 2097152, add=WS_YT)
    srd(l, 28, 4, 2097152)
    srd(l, 32, 12, 1835008)
    l.e("s_lshl_b32 s50, s2, 2")
    l.e("s_load_dword s51, s[10:11], s50")
    l.e("s_lshl_b32 s50, s47, 7")
    l.e("v_add_u32 v5, s50, v2")
    l.e("v_lshlrev_b32 v6, 4, v5")
    l.e("v_add_u32 v7, -8, v6")
    l.e("v_add_u32 v8, 1016, v6")
    HQ = [16, 24]
    l.vmem(f"buffer_load_dwordx2 v[{HQ[0]}:{HQ[0]+1}], v7, s[16:19], 0 offen", "h")
    l.vmem(f"buffer_load_dwordx4 v[{HQ[0]+2}:{HQ[0]+5}], v6, s[16:19], 0 offen", "h")
    l.vmem(f"buffer_load_dwordx2 v[{HQ[1]}:{HQ[1]+1}], v8, s[16:19], 0 offen", "h")
    l.vmem(f"buffer_load_dwordx4 v[{HQ[1]+2}:{HQ[1]+5}], v6, s[16:19], 0 offen offset:1024", "h")
    l.e("v_lshlrev_b32 v9, 4, v2")
    l.e("s_lshl_b32 s50, s47, 11")
    l.e("s_add_u32 s52, s49, s50")
    l.e("s_lshl_b32 s53, s46, 12")
    l.e("s_add_u32 s53, s53, s50")
    l.e(f"s_add_u32 m0, s53, {KV0}")
    l.e("s_nop 0")
    l.vmem("buffer_load_dwordx4 v9, s[20:23], s52 offen lds", "kv")
    l.e("s_add_u32 s52, s52, 1024")
    l.e("s_add_u32 m0, m0, 1024")
    l.e("s_nop 0")
    l.vmem("buffer_load_dwordx4 v9, s[20:23], s52 offen lds", "kv")
    l.e("s_cmp_ge_u32 s45, 2")
    l.e(f"s_cbranch_scc1 {name}_wload")

    def build_h(q):
        q.e("v_lshrrev_b32 v10, 2, v5")
        q.e("v_lshlrev_b32 v10, 8, v10")
        q.e("v_and_b32 v11, 3, v5")
        q.e("v_lshl_add_u32 v10, v11, 4, v10")
        q.e("s_lshl_b32 s50, s46, 14")
        q.e(f"s_add_u32 s50, s50, {H0}")
        q.e("v_add_u32 v10, s50, v10")
        for grp in range(2):
            b = HQ[grp]
            C = 32
            for m in range(4):
                q.e(f"v_alignbit_b32 v{C+m}, v{b+2+m}, v{b+1+m}, 16")
                q.e(f"v_alignbit_b32 v{C+4+m}, v{b+1+m}, v{b+m}, 16")
                q.e(f"v_mov_b32 v{C+8+m}, v{b+1+m}")
            o = 4096*grp
            q.e(f"ds_write_b128 v10, v[{b+2}:{b+5}] offset:{o}")
            q.e(f"ds_write_b128 v10, v[{C}:{C+3}] offset:{o+64}")
            q.e(f"ds_write_b128 v10, v[{C+8}:{C+11}] offset:{o+128}")
            q.e(f"ds_write_b128 v10, v[{C+4}:{C+7}] offset:{o+192}")
            q.e("s_nop 1")
        q.e("s_waitcnt lgkmcnt(0)")

    def loader(q, n, issue, tagname):
        vm0 = list(q.vm)
        for s in range(4): issue(s)
        for s in range(8):
            q.wait_vm(f"s{s}")
            q.e("s_barrier")
            if s == 0: build_h(q)
            if 1 <= s <= 4: issue(s+3)
        q.e("s_barrier")
        q.e("s_barrier")

    l.e("v_lshrrev_b32 v12, 3, v2")
    l.e("v_and_b32 v13, 7, v2")
    l.e("v_xor_b32 v13, v13, v12")
    l.e("v_lshlrev_b32 v13, 4, v13")
    l.e("v_lshl_add_u32 v12, v12, 10, v13")
    l.e("s_lshl_b32 s54, s42, 7")
    l.e("s_lshl_b32 s55, s45, 6")
    l.e("s_add_u32 s54, s54, s55")
    l.e("s_lshl_b32 s54, s54, 10")
    l.e("s_lshl_b32 s55, s45, 13")
    def issue_x(s):
        l.e(f"s_add_u32 s56, s54, {s*128}")
        l.e(f"s_add_u32 m0, s55, {SLOT0 + (s%4)*SLOTSZ}")
        for i in range(8):
            if i:
                l.e("s_add_u32 s56, s56, 8192")
                l.e("s_add_u32 m0, m0, 1024")
            else:
                l.e("s_nop 0")
            l.e("s_nop 0")
            l.vmem("buffer_load_dwordx4 v12, s[28:31], s56 offen lds", f"s{s}")
    vm_save = list(l.vm)
    loader(l, 8, issue_x, "x")
    l.e(f"s_branch {name}_conv")
    l.label(f"{name}_wload")
    l.vm = list(vm_save)
    l.e("s_sub_u32 s55, s45, 2")
    VO = 48
    for i in range(7):
        l.e(f"v_add_u32 v12, {64*i}, v2")
        l.e("v_mul_u32_u24 v13, 4682, v12")
        l.e("v_lshrrev_b32 v13, 16, v13")
        l.e("v_mul_u32_u24 v14, 14, v13")
        l.e("v_sub_u32 v14, v12, v14")
        l.e("v_and_b32 v15, 0x13, v13")
        l.e("v_and_b32 v12, 4, v13")
        l.e("v_lshl_or_b32 v15, v12, 1, v15")
        l.e("v_and_b32 v12, 8, v13")
        l.e("v_lshrrev_b32 v12, 1, v12")
        l.e("v_or_b32 v15, v15, v12")
        l.e("v_mul_u32_u24 v15, 3584, v15")
        l.e(f"v_lshl_add_u32 v{VO+i}, v14, 4, v15")
    l.e("s_mul_i32 s54, s55, 114688")
    l.e("s_mul_i32 s56, s43, 224")
    l.e("s_add_u32 s54, s54, s56")
    l.e("s_mul_i32 s55, s55, 7168")
    def issue_w(s):
        l.e(f"s_add_u32 s56, s54, {s*64*3584}")
        l.e(f"s_add_u32 m0, s55, {SLOT0 + (s%4)*SLOTSZ + 16384}")
        for i in range(7):
            if i: l.e("s_add_u32 m0, m0, 1024")
            l.e("s_nop 0")
            l.vmem(f"buffer_load_dwordx4 v{VO+i}, s[32:35], s56 offen lds", f"s{s}")
    loader(l, 7, issue_w, "w")

    l.label(f"{name}_conv")
    l.vm = []
    VA0, VA1, VB = 8, 9, 10
    l.e("v_lshrrev_b32 v5, 2, v3")
    l.e("v_lshlrev_b32 v5, 2, v5")
    l.e("v_lshl_add_u32 v5, v4, 3, v5")
    l.e("v_and_b32 v6, 3, v3")
    l.e("v_sub_u32 v6, 3, v6")
    l.e("v_lshlrev_b32 v6, 6, v6")
    l.e("s_lshl_b32 s50, s46, 14")
    l.e(f"s_add_u32 s50, s50, {H0}")
    l.e("s_lshl_b32 s52, s47, 10")
    l.e("s_add_u32 s50, s50, s52")
    MA0, MA1 = 12, 13
    for m, (va, ma) in enumerate(((VA0, MA0), (VA1, MA1))):
        l.e(f"v_add_u32 v7, {-12+4*m}, v5")
        l.e(f"v_cmp_gt_i32 vcc, 0, v7")
        l.e(f"v_lshl_add_u32 v{va}, v7, 1, v6")
        l.e(f"v_add_u32 v{va}, s50, v{va}")
        l.e(f"v_mov_b32 v11, 0")
        l.e(f"v_cndmask_b32 v11, v11, -1, vcc" if False else f"v_cndmask_b32 v14, 0, -1, vcc")
        l.e(f"v_and_b32 v11, 192, v14")
        l.e(f"v_sub_u32 v{va}, v{va}, v11")
        l.e(f"v_not_b32 v{ma}, v14")
    l.e("s_cmp_eq_u32 s47, 0")
    l.e(f"s_cbranch_scc1 {name}_cm0")
    l.e(f"v_mov_b32 v{MA0}, -1"); l.e(f"v_mov_b32 v{MA1}, -1")
    l.label(f"{name}_cm0")
    l.e("v_lshlrev_b32 v5, 4, v4")
    l.e("v_lshlrev_b32 v6, 5, v3")
    l.e("v_sub_u32 v5, v5, v6")
    l.e("s_lshl_b32 s50, s46, 12")
    l.e("s_lshl_b32 s52, s47, 8")
    l.e("s_add_u32 s50, s50, s52")
    l.e(f"s_add_u32 s50, s50, {KV0+480}")
    l.e(f"v_add_u32 v{VB}, s50, v5")
    VM = 11
    l.e("s_lshl_b32 s52, s47, 8")
    l.e(f"v_add_u32 v{VM}, s52, v5")
    Y = 16
    FA = [48, 112]
    for j in range(32): l.e(f"v_mov_b32 v{Y+j}, 0")
    def creads(st):
        f = FA[st]; L = []
        for e in range(8):
            L.append(f"ds_read_b128 v[{f+32+4*e}:{f+32+4*e+3}], v{VB} offset:{(7-e)*512}")
            L.append(f"ds_read_b64 v[{f+4*e}:{f+4*e+1}], v{VA0} offset:{2048*e}")
            L.append(f"ds_read_b64 v[{f+4*e+2}:{f+4*e+3}], v{VA1} offset:{2048*e}")
        return L
    def cfix(st):
        f = FA[st]
        L = [f"v_and_b32 v{f}, v{MA0}, v{f}", f"v_and_b32 v{f+1}, v{MA0}, v{f+1}", f"v_and_b32 v{f+2}, v{MA1}, v{f+2}", f"v_and_b32 v{f+3}, v{MA1}, v{f+3}",
             f"v_cmp_gt_i32 vcc, 32, v{VM}", f"v_mov_b32 v{MA0}, -1", f"v_mov_b32 v{MA1}, -1"]
        L += [f"v_cndmask_b32 v{f+32+j}, 0, v{f+32+j}, vcc" for j in range(4)]
        L += ["s_nop 1"]
        return L
    def cmfmas(st):
        f = FA[st]; L = []
        for gam in range(7, -1, -1):
            pass
        for s_ in range(8):
            gam = s_
            for e in range(8-gam):
                cc = gam + e
                L.append(f"v_mfma_f32_16x16x32_bf16 v[{Y+4*cc}:{Y+4*cc+3}], v[{f+4*e}:{f+4*e+3}], v[{f+32+4*gam}:{f+32+4*gam+3}], v[{Y+4*cc}:{Y+4*cc+3}]")
        return L
    advc = [f"v_add_u32 v{VA0}, 256, v{VA0}", f"v_add_u32 v{VA1}, 256, v{VA1}", f"v_add_u32 v{VB}, 64, v{VB}"]
    for r in creads(0): l.e(r)
    for a in advc: l.e(a)
    l.e("s_mov_b32 s52, 0")
    l.label(f"{name}_cloop")
    for st in range(2):
        l.e("s_waitcnt lgkmcnt(0)")
        for x in cfix(st): l.e(x)
        l.e(f"v_add_u32 v{VM}, 64, v{VM}")
        M = cmfmas(st); R = creads(1-st)
        for k, m in enumerate(M):
            l.e(m)
            if R: l.e(R.pop(0))
        assert not R
        for a in advc: l.e(a)
    l.e("s_add_u32 s52, s52, 1")
    l.e("s_cmp_lt_u32 s52, 2")
    l.e(f"s_cbranch_scc1 {name}_cloop")
    l.e("s_waitcnt lgkmcnt(0)")
    l.e("s_nop 7")
    l.e("s_cmp_eq_u32 s47, 0")
    l.e(f"s_cbranch_scc1 {name}_nosw")
    for j in range(16): l.e(f"v_swap_b32 v{Y+j}, v{Y+16+j}")
    l.label(f"{name}_nosw")
    RED = SLOT0 + 4096
    l.e("v_lshlrev_b32 v5, 4, v2")
    l.e("s_lshl_b32 s50, s45, 12")
    l.e("v_add_u32 v6, s50, v5")
    l.e("s_xor_b32 s50, s45, 1")
    l.e("s_lshl_b32 s50, s50, 12")
    l.e("v_add_u32 v7, s50, v5")
    for i in range(4):
        l.e(f"ds_write_b128 v6, v[{Y+16+4*i}:{Y+16+4*i+3}] offset:{RED+1024*i}")
    l.e("v_lshlrev_b32 v8, 5, v3")
    l.e("v_lshl_add_u32 v8, v4, 3, v8")
    l.e("s_lshl_b32 s50, s46, 12")
    l.e("s_lshl_b32 s52, s47, 11")
    l.e("s_sub_u32 s50, s50, s52")
    l.e(f"s_add_u32 s50, s50, {KV0 + 4088 - 1536}")
    l.e("v_sub_u32 v9, s50, v8")
    KVV = 48
    for i in range(4):
        l.e(f"ds_read_b64 v[{KVV+2*i}:{KVV+2*i+1}], v9 offset:{(3-i)*512}")
    l.e("s_waitcnt lgkmcnt(0)")
    l.e("s_barrier")
    PR = 64
    for i in range(4):
        l.e(f"ds_read_b128 v[{PR+4*i}:{PR+4*i+3}], v7 offset:{RED+1024*i}")
    l.e("s_cmp_eq_u32 s46, 0")
    l.e("s_cselect_b32 s50, 16, 0")
    l.e("s_lshl_b32 s51, s51, s50")
    l.e("s_and_b32 s51, s51, 0xffff0000")
    l.e("s_lshl_b32 s52, s47, 11")
    l.e("s_add_u32 s52, s52, s49")
    l.e("s_waitcnt lgkmcnt(0)")
    U = 80
    for i in range(4):
        y = Y + 4*i
        l.e(f"v_pk_add_f32 v[{y}:{y+1}], v[{y}:{y+1}], v[{PR+4*i}:{PR+4*i+1}]")
        l.e(f"v_pk_add_f32 v[{y+2}:{y+3}], v[{y+2}:{y+3}], v[{PR+4*i+2}:{PR+4*i+3}]")
        k0, k1 = KVV+2*i, KVV+2*i+1
        l.e(f"v_and_b32 v{U}, 0xffff0000, v{k1}")
        l.e(f"v_lshlrev_b32 v{U+1}, 16, v{k1}")
        l.e(f"v_and_b32 v{U+2}, 0xffff0000, v{k0}")
        l.e(f"v_lshlrev_b32 v{U+3}, 16, v{k0}")
        for r in range(4):
            l.e(f"v_fmac_f32 v{y+r}, s51, v{U+r}")
        l.e(f"v_cvt_pk_bf16_f32 v{U+4+2*(i%2)}, v{y}, v{y+1}")
        l.e(f"v_cvt_pk_bf16_f32 v{U+5+2*(i%2)}, v{y+2}, v{y+3}")
        l.vmem(f"buffer_store_dwordx2 v[{U+4+2*(i%2)}:{U+5+2*(i%2)}], v8, s[24:27], s52 offen offset:{512*i}", "y")
    l.e("s_waitcnt vmcnt(0)")
    l.label(f"{name}_end")
    return kernel(name, p.text(), vgpr=176, sgpr=80)

NS2, SL2 = 9, 16384
YB = NS2*SL2
def gen_g2(name):
    p = Prog()
    p.e("s_cmp_ge_u32 s2, 256")
    p.e(f"s_cbranch_scc1 {name}_end")
    p.e("s_load_dwordx2 s[4:5], s[0:1], 0")
    p.e("s_load_dwordx4 s[8:11], s[0:1], 64")
    p.e("s_load_dwordx2 s[14:15], s[0:1], 88")
    p.e("v_lshrrev_b32 v1, 6, v0")
    p.e("v_and_b32 v2, 63, v0")
    p.e("v_readfirstlane_b32 s3, v1")
    p.e("s_and_b32 s40, s2, 7")
    p.e("s_lshr_b32 s41, s2, 3")
    p.e("s_lshl_b32 s42, s40, 2")
    p.e("s_and_b32 s43, s41, 3")
    p.e("s_add_u32 s42, s42, s43")
    p.e("s_lshr_b32 s43, s41, 2")
    p.e("v_and_b32 v3, 15, v2")
    p.e("v_lshrrev_b32 v4, 4, v2")
    p.e("s_waitcnt lgkmcnt(0)")
    p.e("s_cmp_ge_u32 s3, 4")
    p.e(f"s_cbranch_scc1 {name}_loader")
    c = p
    srd(c, 16, 14, 16384)
    srd(c, 20, 4, 2097152)
    srd(c, 24, 10, 2097152)
    c.e("s_and_b32 s44, s3, 1")
    c.e("s_lshr_b32 s45, s3, 1")
    c.e("s_lshl_b32 s46, s42, 6")
    c.e("s_lshl_b32 s47, s45, 5")
    c.e("s_add_u32 s46, s46, s47")
    c.e("v_add_u32 v5, s46, v3")
    c.e("v_lshlrev_b32 v6, 3, v5")
    ST, XV = 8, 12
    c.vmem(f"buffer_load_dwordx2 v[{ST}:{ST+1}], v6, s[16:19], 0 offen", "st")
    c.vmem(f"buffer_load_dwordx2 v[{ST+2}:{ST+3}], v6, s[16:19], 0 offen offset:128", "st")
    c.e("s_lshl_b32 s46, s43, 7")
    c.e("s_lshl_b32 s47, s44, 6")
    c.e("s_add_u32 s46, s46, s47")
    c.e("v_lshlrev_b32 v6, 10, v5")
    c.e("v_add_u32 v6, s46, v6")
    c.e("v_lshl_add_u32 v7, v4, 3, v6")
    c.e("s_mov_b32 s47, 16384")
    for tb in range(2):
        for db in range(2):
            so = "0" if tb == 0 else "s47"
            c.vmem(f"buffer_load_dwordx2 v[{XV+4*tb+2*db}:{XV+4*tb+2*db+1}], v7, s[20:23], {so} offen offset:{32*db}", "st")
    VO = 20
    c.e("v_and_b32 v7, 1, v4")
    c.e(f"v_lshl_add_u32 v{VO}, v7, 5, v6")
    c.e("v_lshrrev_b32 v7, 1, v4")
    c.e(f"v_lshl_add_u32 v{VO}, v7, 4, v{VO}")
    VB, VA = 21, 22
    c.e("s_lshl_b32 s46, s45, 12")
    c.e("v_lshlrev_b32 v7, 4, v2")
    c.e(f"v_add_u32 v{VB}, s46, v7")
    c.e("v_lshrrev_b32 v5, 2, v3")
    c.e("v_lshl_add_u32 v6, v4, 3, v5")
    c.e("v_lshlrev_b32 v6, 7, v6")
    c.e("v_lshrrev_b32 v5, 1, v5")
    c.e("v_and_b32 v7, 1, v4")
    c.e("v_lshl_or_b32 v5, v7, 1, v5")
    c.e("v_lshlrev_b32 v5, 1, v5")
    c.e("v_and_b32 v7, 3, v3")
    c.e("v_and_b32 v24, 1, v7")
    c.e("v_lshl_add_u32 v6, v24, 3, v6")
    c.e("v_add_u32 v6, 8192, v6")
    c.e("v_lshrrev_b32 v7, 1, v7")
    for db in range(2):
        c.e("s_lshl_b32 s46, s44, 2")
        c.e(f"s_add_u32 s46, s46, {2*db}")
        c.e("v_add_u32 v24, s46, v7")
        c.e("v_xor_b32 v24, v24, v5")
        c.e(f"v_lshl_add_u32 v{VA+db}, v24, 4, v6")
    F = [32, 48]
    ACC = 64
    for j in range(16): c.e(f"v_mov_b32 v{ACC+j}, 0")
    def reads(ks):
        f = F[ks]; L = []
        for db in range(2):
            for m in range(2):
                L.append(f"ds_read_b64_tr_b16 v[{f+4*db+2*m}:{f+4*db+2*m+1}], v{VA+db} offset:{4096*ks+512*m}")
        for tb in range(2):
            L.append(f"ds_read_b128 v[{f+8+4*tb}:{f+8+4*tb+3}], v{VB} offset:{2048*tb+1024*ks}")
        return L
    def mfmas(ks):
        f = F[ks]; L = []
        for db in range(2):
            for tb in range(2):
                a = ACC + (2*db+tb)*4
                L.append(f"v_mfma_f32_16x16x32_bf16 v[{a}:{a+3}], v[{f+4*db}:{f+4*db+3}], v[{f+8+4*tb}:{f+8+4*tb+3}], v[{a}:{a+3}]")
        return L
    c.e("s_barrier")
    for r in reads(0): c.e(r)
    c.e("s_mov_b32 s46, 0")
    c.e("s_mov_b32 s48, 0")
    c.e(f"s_mov_b32 s56, {(-(NS2-1)*SL2) & 0xffffffff}")
    c.e(f"s_mov_b32 s57, {SL2}")
    c.e("s_waitcnt lgkmcnt(0)")
    c.label(f"{name}_loop")
    c.e("s_add_u32 s48, s48, 1")
    c.e(f"s_cmp_eq_u32 s48, {NS2}")
    c.e(f"s_cselect_b32 s47, s56, s57")
    c.e(f"s_cselect_b32 s48, 0, s48")
    R = reads(1)
    for r in R: c.e(r)
    for m in mfmas(0): c.e(m)
    for r in (VB, VA, VA+1): c.e(f"v_add_u32 v{r}, s47, v{r}")
    c.e("s_waitcnt lgkmcnt(0)")
    c.e("s_barrier")
    for r in reads(0): c.e(r)
    for m in mfmas(1): c.e(m)
    c.e("s_add_u32 s46, s46, 1")
    c.e("s_cmp_lt_u32 s46, 28")
    c.e("s_waitcnt lgkmcnt(0)")
    c.e(f"s_cbranch_scc1 {name}_loop")
    c.e("v_lshrrev_b32 v5, 2, v3")
    c.e("v_lshl_add_u32 v5, v4, 2, v5")
    c.e("s_lshl_b32 s46, s44, 5")
    c.e("v_add_u32 v5, s46, v5")
    c.e("v_lshlrev_b32 v5, 7, v5")
    c.e("v_and_b32 v6, 3, v3")
    c.e("v_lshl_add_u32 v5, v6, 3, v5")
    c.e("s_lshl_b32 s46, s45, 6")
    c.e(f"s_add_u32 s46, s46, {YB}")
    c.e("v_add_u32 v5, s46, v5")
    YV = 32
    for tb in range(2):
        for db in range(2):
            c.e(f"ds_read_b64_tr_b16 v[{YV+4*tb+2*db}:{YV+4*tb+2*db+1}], v5 offset:{2048*db+32*tb}")
    c.wait_vm("st")
    RS = 40
    for tb in range(2):
        c.e(f"v_rcp_f32 v{RS+2*tb}, v{ST+2*tb+1}")
    c.e("s_waitcnt lgkmcnt(0)")
    XU, YU, P = 44, 48, 52
    c.e("s_mov_b32 s47, 16384")
    for tb in range(2):
        q = P + 4*tb
        for db in range(2):
            a = ACC + (2*db+tb)*4
            x0 = XV+4*tb+2*db; y0 = YV+4*tb+2*db
            c.e(f"v_lshlrev_b32 v{XU}, 16, v{x0}"); c.e(f"v_and_b32 v{XU+1}, 0xffff0000, v{x0}")
            c.e(f"v_lshlrev_b32 v{XU+2}, 16, v{x0+1}"); c.e(f"v_and_b32 v{XU+3}, 0xffff0000, v{x0+1}")
            c.e(f"v_lshlrev_b32 v{YU}, 16, v{y0}"); c.e(f"v_and_b32 v{YU+1}, 0xffff0000, v{y0}")
            c.e(f"v_lshlrev_b32 v{YU+2}, 16, v{y0+1}"); c.e(f"v_and_b32 v{YU+3}, 0xffff0000, v{y0+1}")
            for h in range(2):
                xu, yu, aa = XU+2*h, YU+2*h, a+2*h
                c.e(f"v_pk_add_f32 v[{aa}:{aa+1}], v[{aa}:{aa+1}], v[{xu}:{xu+1}]")
                c.e(f"v_pk_add_f32 v[{xu}:{xu+1}], v[{xu}:{xu+1}], v[{ST+2*tb}:{ST+2*tb+1}] op_sel_hi:[1,0] neg_lo:[0,1] neg_hi:[0,1]")
                c.e(f"v_pk_mul_f32 v[{yu}:{yu+1}], v[{yu}:{yu+1}], v[{RS+2*tb}:{RS+2*tb+1}] op_sel_hi:[1,0]")
                c.e(f"v_pk_fma_f32 v[{aa}:{aa+1}], v[{xu}:{xu+1}], v[{yu}:{yu+1}], v[{aa}:{aa+1}]")
                c.e(f"v_cvt_pk_bf16_f32 v{q+2*db+h}, v{aa}, v{aa+1}")
        c.e("s_nop 1")
        c.e(f"v_permlane16_swap_b32 v{q}, v{q+2}")
        c.e(f"v_permlane16_swap_b32 v{q+1}, v{q+3}")
        so = "0" if tb == 0 else "s47"
        c.vmem(f"buffer_store_dwordx4 v[{q}:{q+3}], v{VO}, s[24:27], {so} offen", "o")
    c.e("s_waitcnt vmcnt(0)")
    c.e("s_endpgm")

    l = p; l.vm = []
    l.label(f"{name}_loader")
    srd(l, 16, 14, H_BYTES, add=WS_H)
    srd(l, 20, 8, 1835008)
    srd(l, 24, 14, 2097152, add=WS_YT)
    l.e("s_sub_u32 s45, s3, 4")
    l.e("v_lshrrev_b32 v10, 3, v2")
    l.e("v_lshlrev_b32 v10, 12, v10")
    l.e("v_and_b32 v11, 7, v2")
    l.e("v_lshl_add_u32 v10, v11, 4, v10")
    l.e("s_lshl_b32 s58, s43, 18")
    l.e("s_lshl_b32 s59, s42, 7")
    l.e("s_add_u32 s58, s58, s59")
    l.e("s_lshl_b32 s59, s45, 16")
    l.e("s_add_u32 s58, s58, s59")
    l.e("s_lshl_b32 s59, s45, 11")
    l.e(f"s_add_u32 s59, s59, {YB}")
    def ytile():
        l.e("s_mov_b32 m0, s59"); l.e("s_nop 0")
        l.vmem("buffer_load_dwordx4 v10, s[24:27], s58 offen lds", "y")
        l.e("s_add_u32 s58, s58, 32768"); l.e("s_add_u32 m0, m0, 1024"); l.e("s_nop 0")
        l.vmem("buffer_load_dwordx4 v10, s[24:27], s58 offen lds", "y")
    def run_loader(tag, issue_code, setup):
        setup()
        l.e("s_mov_b32 s60, 0")
        l.e(f"s_mov_b32 s63, {(-(NS2-1)*SL2) & 0xffffffff}")
        l.e(f"s_mov_b32 s64, {SL2}")
        def adv():
            l.e("s_add_u32 s60, s60, 1")
            l.e(f"s_cmp_eq_u32 s60, {NS2}")
            l.e(f"s_cselect_b32 s61, s63, s64")
            l.e(f"s_cselect_b32 s60, 0, s60")
            l.e("s_add_u32 s57, s57, s61")
        l.e("s_mov_b32 s62, 0")
        l.label(f"{name}_{tag}_pro")
        issue_code(); adv()
        l.e("s_add_u32 s62, s62, 1"); l.e(f"s_cmp_lt_u32 s62, {NS2}"); l.e(f"s_cbranch_scc1 {name}_{tag}_pro")
        l.e(f"s_waitcnt vmcnt({4*(NS2-1)})")
        l.e("s_barrier")
        l.e("s_mov_b32 s62, 1")
        l.label(f"{name}_{tag}_st")
        l.e(f"s_waitcnt vmcnt({4*(NS2-2)})")
        l.e("s_barrier")
        issue_code(); adv()
        l.e("s_add_u32 s62, s62, 1"); l.e(f"s_cmp_le_u32 s62, {28-NS2}"); l.e(f"s_cbranch_scc1 {name}_{tag}_st")
        ytile()
        for s in range(29-NS2, 28):
            l.e(f"s_waitcnt vmcnt({4*(27-s)+2})")
            l.e("s_barrier")
        l.e("s_waitcnt vmcnt(0)")
        l.e("s_barrier")
        l.e("s_endpgm")
    l.e("s_cmp_ge_u32 s45, 2")
    l.e(f"s_cbranch_scc1 {name}_w2load")
    def setup_h():
        l.e("v_lshlrev_b32 v12, 4, v2")
        l.e("s_lshl_b32 s54, s42, 2")
        l.e("s_lshl_b32 s55, s45, 1")
        l.e("s_add_u32 s54, s54, s55")
        l.e("s_mul_i32 s54, s54, 57344")
        l.e("s_lshl_b32 s57, s45, 12")
    def issue_h():
        l.e("s_mov_b32 m0, s57")
        l.e("s_add_u32 s56, s54, 1024")
        l.vmem("buffer_load_dwordx4 v12, s[16:19], s54 offen lds", "d")
        l.e("s_add_u32 m0, m0, 1024")
        l.e("s_add_u32 s55, s54, 57344")
        l.vmem("buffer_load_dwordx4 v12, s[16:19], s56 offen lds", "d")
        l.e("s_add_u32 m0, m0, 1024")
        l.e("s_add_u32 s56, s56, 57344")
        l.vmem("buffer_load_dwordx4 v12, s[16:19], s55 offen lds", "d")
        l.e("s_add_u32 m0, m0, 1024")
        l.e("s_add_u32 s54, s54, 2048")
        l.vmem("buffer_load_dwordx4 v12, s[16:19], s56 offen lds", "d")
    run_loader("h", issue_h, setup_h)
    l.label(f"{name}_w2load")
    def setup_w():
        l.e("v_lshrrev_b32 v5, 3, v2")
        l.e("v_lshrrev_b32 v6, 1, v5")
        l.e("v_and_b32 v6, 1, v6")
        l.e("v_and_b32 v7, 7, v2")
        for par in range(2):
            l.e(f"v_or_b32 v8, {2*par}, v6")
            l.e("v_lshlrev_b32 v8, 1, v8")
            l.e("v_xor_b32 v8, v8, v7")
            l.e("v_lshlrev_b32 v8, 4, v8")
            l.e(f"v_lshl_add_u32 v{12+par}, v5, 10, v8")
        l.e("s_sub_u32 s55, s45, 2")
        l.e("s_lshl_b32 s54, s55, 15")
        l.e("s_lshl_b32 s56, s43, 7")
        l.e("s_add_u32 s54, s54, s56")
        l.e("s_lshl_b32 s57, s55, 12")
        l.e("s_add_u32 s57, s57, 8192")
    def issue_w():
        l.e("s_mov_b32 m0, s57")
        l.e("s_add_u32 s56, s54, 8192")
        l.vmem("buffer_load_dwordx4 v12, s[20:23], s54 offen lds", "d")
        l.e("s_add_u32 m0, m0, 1024")
        l.e("s_add_u32 s55, s54, 16384")
        l.vmem("buffer_load_dwordx4 v13, s[20:23], s56 offen lds", "d")
        l.e("s_add_u32 m0, m0, 1024")
        l.e("s_add_u32 s56, s54, 24576")
        l.vmem("buffer_load_dwordx4 v12, s[20:23], s55 offen lds", "d")
        l.e("s_add_u32 m0, m0, 1024")
        l.e("s_add_u32 s54, s54, 65536")
        l.vmem("buffer_load_dwordx4 v13, s[20:23], s56 offen lds", "d")
    run_loader("w", issue_w, setup_w)
    l.label(f"{name}_end")
    return kernel(name, p.text(), vgpr=96, sgpr=80)

def build():
    ks = [gen_prep("prep_kernel"), gen_g1("g1_kernel"), gen_g2("g2_kernel")]
    hdr = open("cdna_kernels/" + NAME + ".s.ref").read().split("\n")
    out = []
    for line in hdr:
        if line.startswith("; Override") or line.startswith("; grid=") or line.startswith("; @launch"):
            continue
        if line.startswith(";"):
            out.append(line)
        else:
            break
    out.append("; @launch kernel=prep_kernel grid=(256,1,1) block=(256,1,1) lds=8192")
    out.append("; @launch kernel=g1_kernel grid=(256,1,1) block=(512,1,1) lds=163840")
    out.append("; @launch kernel=g2_kernel grid=(256,1,1) block=(512,1,1) lds=155648")
    out.append('.amdgcn_target "amdgcn-amd-amdhsa--gfx950"')
    txt = "\n".join(out) + "\n"
    for code, desc in ks: txt += code
    for code, desc in ks: txt += desc
    return txt

if __name__ == "__main__":
    dst = sys.argv[1] if len(sys.argv) > 1 else "cdna_kernels/" + NAME + ".s"
    open(dst, "w").write(build())
    print("wrote", dst)
```

```python
class Prog:
    def __init__(self):
        self.L = []
        self.vm = []
    def e(self, s):
        for l in s.strip("\n").split("\n"):
            self.L.append("    " + l.strip())
    def label(self, n):
        self.L.append(n + ":")
    def c(self, s):
        self.L.append("    ; " + s)
    def vmem(self, s, tag="x"):
        self.e(s); self.vm.append(tag)
    def wait_vm(self, tag, extra=""):
        idx = [i for i, t in enumerate(self.vm) if t == tag]
        if not idx:
            return
        last = idx[-1]
        n = len(self.vm) - 1 - last
        assert n <= 63, n
        self.e(f"s_waitcnt vmcnt({n}){(' ' + extra) if extra else ''}")
        self.vm = self.vm[last + 1:]
    def wait_vm_all(self):
        self.e("s_waitcnt vmcnt(0)"); self.vm = []
    def text(self):
        return "\n".join(self.L) + "\n"

def vr(b, n=1):
    return f"v{b}" if n == 1 else f"v[{b}:{b+n-1}]"
def sr(b, n=1):
    return f"s{b}" if n == 1 else f"s[{b}:{b+n-1}]"

def srd(p, dst, base_lo, size, add=None):
    if add is None:
        p.e(f"s_mov_b32 s{dst}, s{base_lo}")
        p.e(f"s_mov_b32 s{dst+1}, s{base_lo+1}")
    else:
        p.e(f"s_add_u32 s{dst}, s{base_lo}, {add}")
        p.e(f"s_addc_u32 s{dst+1}, s{base_lo+1}, 0")
    p.e(f"s_mov_b32 s{dst+2}, {size}")
    p.e(f"s_mov_b32 s{dst+3}, 0x00020000")

def kernel(name, body, vgpr, sgpr=96, agpr=0):
    acc = (vgpr + 3) // 4 * 4
    tot = acc + agpr if agpr else vgpr
    head = f""".text
.globl {name}
.p2align 8
.type {name},@function
{name}:
"""
    tail = f"""    s_endpgm
"""
    desc = f""".section .rodata,"a"
.p2align 6
.amdhsa_kernel {name}
  .amdhsa_next_free_vgpr {tot}
  .amdhsa_next_free_sgpr {sgpr}
  .amdhsa_accum_offset {acc}
  .amdhsa_group_segment_fixed_size 0
  .amdhsa_kernarg_size 96
  .amdhsa_user_sgpr_count 2
  .amdhsa_user_sgpr_kernarg_segment_ptr 1
  .amdhsa_system_sgpr_workgroup_id_x 1
  .amdhsa_float_denorm_mode_32 3
.end_amdhsa_kernel
"""
    return head + body + tail, desc

PROF_OFF = 0x4000000
class Stamps:
    def __init__(self, on, kid):
        self.on = on; self.kid = kid
    def stamp(self, p, i, cyc=False):
        if self.on:
            p.e(f"s_mem{'time' if cyc else 'realtime'} s[{82+2*i}:{83+2*i}]")
    def flush(self, p, n, ws_lo, wave_sgpr):
        if not self.on: return
        p.e("s_waitcnt lgkmcnt(0)")
        p.e(f"s_lshl_b32 s80, s2, 3")
        p.e(f"s_add_u32 s80, s80, s{wave_sgpr}")
        p.e(f"s_lshl_b32 s80, s80, 7")
        p.e(f"s_add_u32 s80, s80, {PROF_OFF + self.kid*256*8*128}")
        p.e(f"s_add_u32 s80, s{ws_lo}, s80")
        p.e(f"s_addc_u32 s81, s{ws_lo+1}, 0")
        p.e("s_mov_b64 exec, 1")
        p.e("v_mov_b32 v0, 0")
        for i in range(n):
            p.e(f"v_mov_b32 v2, s{82+2*i}")
            p.e(f"v_mov_b32 v3, s{83+2*i}")
            p.e(f"global_store_dwordx2 v0, v[2:3], s[80:81] offset:{8*i}")
            p.e("s_nop 1")
        p.e("s_waitcnt vmcnt(0)")
```

```python
import sys, os
from asmlib import *
from gen_layout import *
PROF = int(os.environ.get("PROF", "0"))
NOPK = int(os.environ.get("NOPK", "0"))
NAME = "parallel_sum__ssm_conv_h3__dense_activation_silu__prompt"
KN = NAME + "_kernel"

KV0, H0 = 0, 8192
SLOT0, SLOTSZ = 40960, 30720
CSB = 40960
STB = 40960 + 512
YB = 40960
HSA, NH1, NHS = 49152, 4, 8
RED = 81920
LSF = 40960 + 1536
WS0, NWS = 98304, 8

P_Q, P_K, P_V, P_SH, P_SK, P_SD, P_W1, P_W2, P_OUT, P_WS = 4, 6, 8, 10, 12, 14, 18, 20, 22, 26
FL = 28
TAG = 32
XCD, II, RB, FT, TT, DT, SPIN = 33, 34, 35, 36, 37, 38, 39
SA, SB, SC, SD_, SE = 40, 44, 48, 52, 56
SPIN_MAX = 200000
CODE_LINES = 4
LPRIO = int(os.environ.get("LPRIO", "0"))
ROT2 = int(os.environ.get("ROT2", "1"))
O2 = 16
STASH = int(os.environ.get("STASH", "1"))
HSC = " sc1" if int(os.environ.get("HSC1", "0")) else ""

uid = [0]
def L(prefix):
    uid[0] += 1
    return f"L_{prefix}_{uid[0]}"

def allreduce(p, regs, tmp):
    for mod in ("quad_perm:[1,0,3,2]", "quad_perm:[2,3,0,1]", "row_half_mirror", "row_mirror"):
        p.e("s_nop 1")
        for r in regs:
            p.e(f"v_add_f32_dpp v{r}, v{r}, v{r} {mod} row_mask:0xf bank_mask:0xf")
    rowreduce(p, regs, tmp)

def rowreduce(p, regs, tmp):
    for sw in ("v_permlane16_swap_b32", "v_permlane32_swap_b32"):
        for r, t in zip(regs, tmp): p.e(f"v_mov_b32 v{t}, v{r}")
        p.e("s_nop 1")
        for r, t in zip(regs, tmp): p.e(f"{sw} v{t}, v{r}")
        p.e("s_nop 1")
        for r, t in zip(regs, tmp): p.e(f"v_add_f32 v{r}, v{r}, v{t}")

def poll(p, items, soft=None):
    lp, done = L("poll"), L("pdone")
    allit = list(items) + ([soft] if soft else [])
    p.e(f"s_mov_b32 s{SPIN}, {SPIN_MAX}")
    p.label(lp)
    for (va, so, vt, w, full) in allit:
        if w == 1: p.e(f"buffer_load_dword v{vt}, v{va}, s[{FL}:{FL+3}], {so} offen sc1")
        else: p.e(f"buffer_load_dwordx2 v[{vt}:{vt+1}], v{va}, s[{FL}:{FL+3}], {so} offen sc1")
    p.e("s_waitcnt vmcnt(0)")
    if soft:
        (va, so, vt, w, full) = soft
        p.e(f"v_cmp_ne_u32 vcc, s{TAG}, v{vt + (w-1)}")
        p.e("s_nop 1")
        if not full: p.e("s_mov_b32 vcc_hi, 0")
        p.e("s_cmp_eq_u64 vcc, 0")
        p.e("s_cselect_b32 s78, 1, 0")
    for k, (va, so, vt, w, full) in enumerate(items):
        p.e(f"v_cmp_ne_u32 vcc, s{TAG}, v{vt + (w-1)}")
        p.e("s_nop 1")
        if not full: p.e("s_mov_b32 vcc_hi, 0")
        if k == 0: p.e("s_mov_b64 s[74:75], vcc")
        else: p.e("s_or_b64 s[74:75], s[74:75], vcc")
    p.e("s_cmp_eq_u64 s[74:75], 0")
    p.e(f"s_cbranch_scc1 {done}")
    p.e(f"s_sub_u32 s{SPIN}, s{SPIN}, 1")
    p.e(f"s_cbranch_scc1 {done}")
    p.e("s_sleep 1")
    p.e(f"s_branch {lp}")
    p.label(done)
    p.vm = []

def flag_store(p, vaddr, vdata, soff, track=True):
    p.e(f"v_mov_b32 v{vdata}, s{TAG}")
    p.e(f"v_mov_b32 v{vaddr}, 0")
    p.e("s_mov_b64 exec, 1")
    ins = f"buffer_store_dword v{vdata}, v{vaddr}, s[{FL}:{FL+3}], {soff} offen sc1"
    if track: p.vmem(ins, "fl")
    else: p.e(ins)
    p.e("s_mov_b64 exec, -1")

def w2_voffsets(q, dst, t=5):
    q.e(f"v_lshrrev_b32 v{t}, 3, v2")
    q.e(f"v_lshrrev_b32 v{t+1}, 1, v{t}")
    q.e(f"v_and_b32 v{t+1}, 1, v{t+1}")
    q.e(f"v_and_b32 v{t+2}, 7, v2")
    for par in range(2):
        q.e(f"v_or_b32 v{t+3}, {2*par}, v{t+1}")
        q.e(f"v_lshlrev_b32 v{t+3}, 1, v{t+3}")
        q.e(f"v_xor_b32 v{t+3}, v{t+3}, v{t+2}")
        q.e(f"v_lshlrev_b32 v{t+3}, 4, v{t+3}")
        q.e(f"v_lshl_add_u32 v{dst+par}, v{t}, 10, v{t+3}")

def w1_lane_offset(q, dst, t):
    q.e(f"v_lshrrev_b32 v{dst}, 1, v4")
    q.e(f"v_lshlrev_b32 v{dst}, 4, v{dst}")
    q.e(f"v_and_b32 v{t}, 1, v4")
    q.e(f"v_lshl_add_u32 v{dst}, v{t}, 2, v{dst}")
    q.e(f"v_lshrrev_b32 v{t}, 2, v3")
    q.e(f"v_add_u32 v{dst}, v{dst}, v{t}")
    q.e(f"v_mul_u32_u24 v{dst}, 224, v{dst}")
    q.e(f"v_and_b32 v{t}, 3, v3")
    q.e(f"v_lshl_add_u32 v{dst}, v{t}, 3, v{dst}")

def gen():
    p = Prog(); S_ = Stamps(PROF, 0)
    S_.stamp(p, 0)
    p.e("s_cmp_ge_u32 s2, 256")
    p.e(f"s_cbranch_scc1 L_end")
    p.e("s_load_dwordx16 s[4:19], s[0:1], 0")
    p.e("s_load_dwordx8 s[20:27], s[0:1], 64")
    p.e("v_lshrrev_b32 v1, 6, v0")
    p.e("v_and_b32 v2, 63, v0")
    p.e("v_readfirstlane_b32 s3, v1")
    p.e(f"s_and_b32 s{XCD}, s2, 7")
    p.e(f"s_lshr_b32 s{II}, s2, 3")
    p.e(f"s_and_b32 s60, s{II}, 3")
    p.e(f"s_lshr_b32 s61, s{II}, 2")
    p.e(f"s_and_b32 s{RB}, s{XCD}, 3")
    p.e(f"s_lshl_b32 s{RB}, s{RB}, 2")
    p.e(f"s_add_u32 s{RB}, s{RB}, s60")
    p.e(f"s_lshr_b32 s{FT}, s{XCD}, 2")
    p.e(f"s_lshl_b32 s{FT}, s{FT}, 3")
    p.e(f"s_add_u32 s{FT}, s{FT}, s61")
    p.e(f"s_lshl_b32 s{TT}, s{XCD}, 2")
    p.e(f"s_add_u32 s{TT}, s{TT}, s60")
    p.e(f"s_mov_b32 s{DT}, s61")
    p.e("v_and_b32 v3, 15, v2")
    p.e("v_lshrrev_b32 v4, 4, v2")
    p.e("v_mov_b32 v5, 0")
    p.e(f"s_mov_b32 s62, {WS_E}")
    p.e("s_waitcnt lgkmcnt(0)")
    if ROT2:
        p.e(f"s_mul_i32 s{O2}, s60, 7")
        p.e(f"s_mul_i32 s63, s61, 7")
        p.e(f"s_lshr_b32 s63, s63, 1")
        p.e(f"s_add_u32 s{O2}, s{O2}, s63")
        p.e(f"s_cmp_ge_u32 s{O2}, 28")
        p.e(f"s_cselect_b32 s63, 28, 0")
        p.e(f"s_sub_u32 s{O2}, s{O2}, s63")
    else:
        p.e(f"s_mov_b32 s{O2}, 0")
    srd(p, FL, P_WS, WS_FLSZ)
    p.vmem(f"buffer_load_dword v110, v5, s[{FL}:{FL+3}], s62 offen sc1", "E")
    p.e("s_cmp_ge_u32 s3, 4")
    p.e(f"s_cbranch_scc1 L_loader")
    vmE = list(p.vm)

    def get_tag(q):
        q.wait_vm("E")
        q.e(f"v_readfirstlane_b32 s{TAG}, v110")
        q.e("s_nop 3")
        q.e(f"s_mul_i32 s{TAG}, s{TAG}, 0x9E3779B1")
        q.e(f"s_add_u32 s{TAG}, s{TAG}, 0x7F4A7C15")

    c = p
    srd(c, SA, P_K, 2097152)
    srd(c, SB, P_V, 2097152)
    srd(c, SC, P_SH, 4096)
    c.e("v_and_b32 v8, 7, v0")
    c.e("v_lshrrev_b32 v9, 3, v0")
    c.e(f"s_lshl_b32 s60, s{II}, 16")
    c.e(f"s_lshl_b32 s61, s{XCD}, 7")
    c.e("s_add_u32 s60, s60, s61")
    c.e("v_lshlrev_b32 v10, 11, v9")
    c.e("v_lshl_add_u32 v10, v8, 4, v10")
    c.e("v_add_u32 v10, s60, v10")
    c.e("v_add_u32 v11, 0xfffff400, v10")
    c.e("v_add_u32 v12, 0xfffff800, v10")
    c.e("v_add_u32 v13, 0xfffffc00, v10")
    c.e(f"s_lshl_b32 s61, s{XCD}, 9")
    c.e("v_lshlrev_b32 v14, 6, v8")
    c.e("v_add_u32 v14, s61, v14")
    KR, VR, SK = 16, 36, 44
    c.vmem(f"buffer_load_dwordx4 v[{KR}:{KR+3}], v11, s[{SA}:{SA+3}], 0 offen", "k")
    c.vmem(f"buffer_load_dwordx4 v[{KR+4}:{KR+7}], v12, s[{SA}:{SA+3}], 0 offen", "k")
    c.vmem(f"buffer_load_dwordx4 v[{KR+8}:{KR+11}], v13, s[{SA}:{SA+3}], 0 offen", "k")
    c.vmem(f"buffer_load_dwordx4 v[{KR+12}:{KR+15}], v10, s[{SA}:{SA+3}], 0 offen", "k")
    c.vmem(f"buffer_load_dwordx4 v[{KR+16}:{KR+19}], v10, s[{SA}:{SA+3}], 0 offen offset:1024", "k")
    c.vmem(f"buffer_load_dwordx4 v[{VR}:{VR+3}], v10, s[{SB}:{SB+3}], 0 offen", "k")
    c.vmem(f"buffer_load_dwordx4 v[{VR+4}:{VR+7}], v10, s[{SB}:{SB+3}], 0 offen offset:1024", "k")
    for j in range(4):
        c.vmem(f"buffer_load_dwordx4 v[{SK+4*j}:{SK+4*j+3}], v14, s[{SC}:{SC+3}], 0 offen offset:{16*j}", "k")
    srd(c, SD_, P_WS, 2097152, add=WS_KVR)
    srd(c, SE, P_WS, H_BYTES, add=WS_H)
    VX0, VX1, VW = 168, 169, 170
    c.e("v_and_b32 v5, 7, v3")
    c.e("v_xor_b32 v5, v5, v4")
    c.e("v_lshlrev_b32 v5, 4, v5")
    c.e("s_lshl_b32 s60, s3, 5")
    c.e("v_add_u32 v6, s60, v3")
    c.e(f"v_lshl_add_u32 v{VX0}, v6, 7, v5")
    c.e(f"v_add_u32 v{VX0}, {SLOT0}, v{VX0}")
    c.e(f"v_xor_b32 v{VX1}, 64, v{VX0}")
    w1_lane_offset(c, VW, 6)
    c.e(f"v_add_u32 v{VW}, {SLOT0+16384}, v{VW}")
    VA0, VA1, VB_, MA0, MA1, VM = 160, 161, 162, 163, 164, 165
    CH, ROLE = 71, 72
    c.e(f"s_lshr_b32 s{CH}, s3, 1")
    c.e(f"s_and_b32 s{ROLE}, s3, 1")
    c.e("v_lshrrev_b32 v5, 2, v3")
    c.e("v_lshlrev_b32 v5, 2, v5")
    c.e("v_lshl_add_u32 v5, v4, 3, v5")
    c.e("v_and_b32 v6, 3, v3")
    c.e("v_sub_u32 v6, 3, v6")
    c.e("v_lshlrev_b32 v6, 6, v6")
    c.e(f"s_lshl_b32 s60, s{CH}, 14")
    c.e(f"s_add_u32 s60, s60, {H0}")
    for m, (va, ma) in enumerate(((VA0, MA0), (VA1, MA1))):
        c.e(f"v_add_u32 v7, {-12+4*m}, v5")
        c.e(f"v_cmp_gt_i32 vcc, 0, v7")
        c.e(f"v_lshl_add_u32 v{va}, v7, 1, v6")
        c.e(f"v_add_u32 v{va}, s60, v{va}")
        c.e(f"s_nop 0")
        c.e(f"v_cndmask_b32 v15, 0, -1, vcc")
        c.e(f"v_and_b32 v1, 192, v15")
        c.e(f"v_sub_u32 v{va}, v{va}, v1")
        c.e(f"v_not_b32 v{ma}, v15")
    cm = L("cm0")
    c.e(f"s_cmp_eq_u32 s{ROLE}, 0")
    c.e(f"s_cbranch_scc1 {cm}")
    c.e(f"v_mov_b32 v{MA0}, -1"); c.e(f"v_mov_b32 v{MA1}, -1")
    c.e(f"v_add_u32 v{VA0}, 1024, v{VA0}"); c.e(f"v_add_u32 v{VA1}, 1024, v{VA1}")
    c.label(cm)
    c.e("v_lshlrev_b32 v5, 4, v4")
    c.e("v_lshlrev_b32 v6, 5, v3")
    c.e(f"v_sub_u32 v{VM}, v5, v6")
    c.e(f"s_lshl_b32 s60, s{ROLE}, 8")
    c.e(f"v_add_u32 v{VM}, s60, v{VM}")
    c.e(f"s_lshl_b32 s60, s{CH}, 12")
    c.e(f"s_add_u32 s60, s60, {KV0+480}")
    c.e(f"v_add_u32 v{VB_}, s60, v{VM}")
    ACC = 104
    get_tag(c)
    for j in range(56): c.e(f"v_mov_b32 v{ACC+j}, 0")
    c.wait_vm("k")
    T, W, VV, A, B, R = 64, 74, 82, 86, 88, 96
    for q in range(4):
        for j in range(5):
            c.e(f"v_lshlrev_b32 v{T+2*j}, 16, v{KR+4*j+q}")
            c.e(f"v_and_b32 v{T+2*j+1}, 0xffff0000, v{KR+4*j+q}")
        c.e(f"v_lshlrev_b32 v{W+0}, 16, v{SK+4*q}")
        c.e(f"v_lshlrev_b32 v{W+1}, 16, v{SK+4*q+2}")
        c.e(f"v_and_b32 v{W+2}, 0xffff0000, v{SK+4*q}")
        c.e(f"v_and_b32 v{W+3}, 0xffff0000, v{SK+4*q+2}")
        c.e(f"v_lshlrev_b32 v{W+4}, 16, v{SK+4*q+1}")
        c.e(f"v_lshlrev_b32 v{W+5}, 16, v{SK+4*q+3}")
        c.e(f"v_and_b32 v{W+6}, 0xffff0000, v{SK+4*q+1}")
        c.e(f"v_and_b32 v{W+7}, 0xffff0000, v{SK+4*q+3}")
        for j in range(2):
            c.e(f"v_lshlrev_b32 v{VV+2*j}, 16, v{VR+4*j+q}")
            c.e(f"v_and_b32 v{VV+2*j+1}, 0xffff0000, v{VR+4*j+q}")
        def pr(b): return f"v[{b}:{b+1}]"
        c.e(f"v_pk_mul_f32 {pr(A)}, {pr(T+6)}, {pr(W)}")
        c.e(f"v_pk_mul_f32 {pr(B)}, {pr(T+8)}, {pr(W)}")
        c.e(f"v_pk_fma_f32 {pr(A)}, {pr(T+4)}, {pr(W+2)}, {pr(A)}")
        c.e(f"v_pk_fma_f32 {pr(B)}, {pr(T+6)}, {pr(W+2)}, {pr(B)}")
        c.e(f"v_pk_fma_f32 {pr(A)}, {pr(T+2)}, {pr(W+4)}, {pr(A)}")
        c.e(f"v_pk_fma_f32 {pr(B)}, {pr(T+4)}, {pr(W+4)}, {pr(B)}")
        c.e(f"v_pk_fma_f32 {pr(A)}, {pr(T+0)}, {pr(W+6)}, {pr(A)}")
        c.e(f"v_pk_fma_f32 {pr(B)}, {pr(T+2)}, {pr(W+6)}, {pr(B)}")
        c.e(f"v_pk_mul_f32 {pr(A)}, {pr(A)}, {pr(VV)}")
        c.e(f"v_pk_mul_f32 {pr(B)}, {pr(B)}, {pr(VV+2)}")
        c.e(f"v_cvt_pk_bf16_f32 v{R+2*q}, v{B}, v{A}")
        c.e(f"v_cvt_pk_bf16_f32 v{R+2*q+1}, v{B+1}, v{A+1}")
    c.e("v_sub_u32 v10, 31, v9")
    c.e("v_lshlrev_b32 v11, 2, v8")
    c.e("v_xor_b32 v10, v10, v11")
    c.e("v_lshlrev_b32 v10, 2, v10")
    c.e("v_lshl_add_u32 v10, v8, 10, v10")
    for i in range(8):
        c.e(f"ds_write_b32 v10, v{R+i} offset:{128*i}")
    c.e("v_lshrrev_b32 v11, 3, v9")
    c.e("v_xor_b32 v11, v11, v8")
    c.e("v_lshlrev_b32 v11, 4, v11")
    c.e("v_lshl_add_u32 v11, v9, 7, v11")
    c.e("v_xor_b32 v12, 64, v11")
    c.e("v_lshlrev_b32 v13, 12, v9")
    c.e("v_lshl_add_u32 v13, v8, 4, v13")
    c.e(f"s_lshl_b32 s60, s{XCD}, 18")
    c.e(f"s_lshl_b32 s61, s{II}, 7")
    c.e("s_sub_u32 s61, 3968, s61")
    c.e("s_add_u32 s60, s60, s61")
    c.e("s_add_u32 s61, s60, 131072")
    F = [32, 68]
    def reads(hs):
        f = F[hs]; Lr = []
        vx = VX0 if hs == 0 else VX1
        for tb in range(2):
            Lr.append(f"ds_read_b128 v[{f+28+4*tb}:{f+28+4*tb+3}], v{vx} offset:{2048*tb}")
        for i in range(7):
            for m in range(2):
                Lr.append(f"ds_read_b64_tr_b16 v[{f+4*i+2*m}:{f+4*i+2*m+1}], v{VW} offset:{7168*hs+1792*m+32*i}")
        return Lr
    def mfmas(hs):
        f = F[hs]; Lm = []
        for i in range(7):
            for tb in range(2):
                a = ACC + (2*i+tb)*4
                Lm.append(f"v_mfma_f32_16x16x32_bf16 v[{a}:{a+3}], v[{f+4*i}:{f+4*i+3}], v[{f+28+4*tb}:{f+28+4*tb+3}], v[{a}:{a+3}]")
        return Lm
    def interleave(M, R_, per=2, extra=()):
        R_ = list(R_); X = list(extra)
        for k, m in enumerate(M):
            c.e(m)
            for _ in range(per):
                if R_: c.e(R_.pop(0))
            if not R_ and X and k >= 9:
                for _ in range(2):
                    if X: c.e(X.pop(0))
        assert not R_ and not X
    c.e("s_waitcnt lgkmcnt(0)")
    if PROF == 2: S_.stamp(c, 2)
    c.e("s_barrier")
    S_.stamp(c, 3)
    if PROF == 3: S_.stamp(c, 5, cyc=True)
    c.e("ds_read_b128 v[16:19], v11")
    c.e("ds_read_b128 v[20:23], v12 offset:4096")
    for r in reads(0): c.e(r)
    c.e("s_waitcnt lgkmcnt(0)")
    c.vmem(f"buffer_store_dwordx4 v[16:19], v13, s[{SD_}:{SD_+3}], s60 offen sc1", "kvst")
    c.vmem(f"buffer_store_dwordx4 v[20:23], v13, s[{SD_}:{SD_+3}], s61 offen sc1", "kvst")
    c.e("s_mov_b32 s60, 0")
    c.e(f"s_mov_b32 s62, {(-3*SLOTSZ) & 0xffffffff}")
    c.e(f"s_mov_b32 s63, {SLOTSZ}")
    c.label("L_g1loop")
    c.e("s_and_b32 s61, s60, 3")
    c.e("s_cmp_eq_u32 s61, 3")
    c.e(f"s_cselect_b32 s61, s62, s63")
    adv = [f"v_add_u32 v{r}, s61, v{r}" for r in [VX0, VX1, VW]]
    interleave(mfmas(0), reads(1), extra=adv)
    sk = L("nodrain")
    c.e("s_cmp_eq_u32 s60, 1")
    c.e(f"s_cbranch_scc0 {sk}")
    c.e("s_waitcnt vmcnt(0)")
    c.label(sk)
    c.e("s_waitcnt lgkmcnt(0)")
    c.e("s_barrier")
    interleave(mfmas(1), reads(0))
    c.e("s_add_u32 s60, s60, 1")
    c.e("s_cmp_lt_u32 s60, 8")
    c.e("s_waitcnt lgkmcnt(0)")
    c.e(f"s_cbranch_scc1 L_g1loop")
    c.vm = []
    S_.stamp(c, 4)
    if PROF == 3: S_.stamp(c, 6, cyc=True)
    CS, ST = 32, 8
    c.e("v_lshlrev_b32 v5, 4, v4")
    for i in range(7):
        c.e(f"ds_read_b128 v[{CS+4*i}:{CS+4*i+3}], v5 offset:{CSB+64*i}")
    c.e("s_lshl_b32 s60, s3, 5")
    c.e("v_add_u32 v6, s60, v3")
    c.e("v_lshlrev_b32 v6, 3, v6")
    c.e(f"ds_read_b64 v[{ST}:{ST+1}], v6 offset:{STB}")
    c.e(f"ds_read_b64 v[{ST+2}:{ST+3}], v6 offset:{STB+128}")
    c.e("v_and_b32 v5, 1, v4")
    c.e("v_mul_u32_u24 v5, 57344, v5")
    c.e("v_lshrrev_b32 v6, 1, v4")
    c.e("v_lshl_add_u32 v5, v6, 8, v5")
    c.e("v_lshl_add_u32 v5, v3, 4, v5")
    c.e(f"s_lshl_b32 s60, s{RB}, 3")
    c.e("s_lshl_b32 s61, s3, 1")
    c.e("s_add_u32 s60, s60, s61")
    c.e("s_mul_i32 s60, s60, 57344")
    c.e(f"s_mul_i32 s61, s{FT}, 3584")
    c.e("s_add_u32 s60, s60, s61")
    c.e("s_waitcnt lgkmcnt(0)")
    C1 = 60
    for tb in range(2): c.e(f"v_rcp_f32 v{C1+2*tb}, v{ST+2*tb+1}")
    c.e("s_nop 0")
    for tb in range(2): c.e(f"v_mul_f32 v{C1+2*tb}, 0xbfb8aa3b, v{C1+2*tb}")
    T, Z, P = 64, 72, 80
    for i in range(7):
        chains = [(tb, h) for tb in range(2) for h in range(2)]
        def tz(k): return T + 2*k, Z + 2*k
        for k, (tb, h) in enumerate(chains):
            t, z = tz(k); a = ACC + (2*i+tb)*4 + 2*h
            c.e(f"v_pk_fma_f32 v[{t}:{t+1}], v[{CS+4*i+2*h}:{CS+4*i+2*h+1}], v[{ST+2*tb}:{ST+2*tb+1}], v[{a}:{a+1}] op_sel_hi:[1,0,1] neg_lo:[0,1,0] neg_hi:[0,1,0]")
        for k, (tb, h) in enumerate(chains):
            t, z = tz(k)
            c.e(f"v_pk_mul_f32 v[{z}:{z+1}], v[{t}:{t+1}], v[{C1+2*tb}:{C1+2*tb+1}] op_sel_hi:[1,0]")
        for k in range(4):
            t, z = tz(k)
            c.e(f"v_exp_f32 v{z}, v{z}"); c.e(f"v_exp_f32 v{z+1}, v{z+1}")
        for k, (tb, h) in enumerate(chains):
            t, z = tz(k)
            c.e(f"v_pk_fma_f32 v[{z}:{z+1}], v[{z}:{z+1}], v[{ST+2*tb}:{ST+2*tb+1}], v[{ST+2*tb}:{ST+2*tb+1}] op_sel:[0,1,1] op_sel_hi:[1,1,1]")
        for k in range(4):
            t, z = tz(k)
            c.e(f"v_rcp_f32 v{z}, v{z}"); c.e(f"v_rcp_f32 v{z+1}, v{z+1}")
        for k in range(4):
            t, z = tz(k)
            c.e(f"v_pk_mul_f32 v[{t}:{t+1}], v[{t}:{t+1}], v[{z}:{z+1}]")
        q = P + 4*(i % 2)
        for k, (tb, h) in enumerate(chains):
            t, z = tz(k)
            c.e(f"v_cvt_pk_bf16_f32 v{q+2*tb+h}, v{t}, v{t+1}")
        c.e(f"s_add_u32 s61, s60, {512*i}")
        c.e("s_nop 0")
        c.e(f"v_permlane16_swap_b32 v{q}, v{q+2}")
        c.e(f"v_permlane16_swap_b32 v{q+1}, v{q+3}")
        c.vmem(f"buffer_store_dwordx4 v[{q}:{q+3}], v5, s[{SE}:{SE+3}], s61 offen sc1", "h")
    if PROF != 3: S_.stamp(c, 5)
    Y = 128
    for j in range(32): c.e(f"v_mov_b32 v{Y+j}, 0")
    srd(c, SA, P_WS, 2097152, add=WS_YT)
    srd(c, SB, P_Q, 2097152)
    srd(c, SC, P_OUT, 2097152)
    c.e("s_lshl_b32 s60, s2, 2")
    c.e(f"s_load_dword s79, s[{P_SD}:{P_SD+1}], s60")
    c.e(f"s_lshl_b32 s60, s{RB}, 4")
    c.e(f"s_add_u32 s60, s60, s{FT}")
    c.e("s_lshl_b32 s60, s60, 2")
    c.e("s_add_u32 s60, s60, s3")
    c.e("s_lshl_b32 s60, s60, 7")
    c.e(f"s_add_u32 s74, s60, {WS_HF}")
    c.e("s_waitcnt lgkmcnt(0)")
    c.e("s_barrier")

    FA = [16, 176]
    def fr(st, i):
        if st == 0: return 16 + i
        return 80 + i if i < 48 else 166 + (i - 48)
    def creads(st):
        Lr = []
        for e in range(8):
            b = fr(st, 32+4*e); a = fr(st, 4*e)
            Lr.append(f"ds_read_b128 v[{b}:{b+3}], v{VB_} offset:{(7-e)*512}")
            Lr.append(f"ds_read_b64 v[{a}:{a+1}], v{VA0} offset:{2048*e}")
            Lr.append(f"ds_read_b64 v[{a+2}:{a+3}], v{VA1} offset:{2048*e}")
        return Lr
    def cfix(st):
        a = fr(st, 0); b = fr(st, 32)
        Lr = [f"v_and_b32 v{a}, v{MA0}, v{a}", f"v_and_b32 v{a+1}, v{MA0}, v{a+1}", f"v_and_b32 v{a+2}, v{MA1}, v{a+2}", f"v_and_b32 v{a+3}, v{MA1}, v{a+3}",
             f"v_cmp_gt_i32 vcc, 32, v{VM}", f"v_mov_b32 v{MA0}, -1", f"v_mov_b32 v{MA1}, -1"]
        Lr += [f"v_cndmask_b32 v{b+j}, 0, v{b+j}, vcc" for j in range(4)]
        Lr += [f"v_add_u32 v{VM}, 64, v{VM}", "s_nop 0"]
        return Lr
    def cmfmas(st):
        Lm = []
        for gam in range(8):
            for e in range(8-gam):
                cc = gam + e; a = fr(st, 4*e); b = fr(st, 32+4*gam)
                Lm.append(f"v_mfma_f32_16x16x32_bf16 v[{Y+4*cc}:{Y+4*cc+3}], v[{a}:{a+3}], v[{b}:{b+3}], v[{Y+4*cc}:{Y+4*cc+3}]")
        return Lm
    advc = [f"v_add_u32 v{VA0}, 256, v{VA0}", f"v_add_u32 v{VA1}, 256, v{VA1}", f"v_add_u32 v{VB_}, 64, v{VB_}"]
    for r in creads(0): c.e(r)
    for a in advc: c.e(a)
    c.e("s_mov_b32 s60, 0")
    c.label("L_cloop")
    for st in range(2):
        c.e("s_waitcnt lgkmcnt(0)")
        for x in cfix(st): c.e(x)
        M = cmfmas(st); R_ = creads(1-st)
        for k, m in enumerate(M):
            c.e(m)
            if R_: c.e(R_.pop(0))
        for a in advc: c.e(a)
        if st == 0:
            nf = L("nohf")
            c.e("s_cmp_eq_u32 s60, 0")
            c.e(f"s_cbranch_scc0 {nf}")
            c.e("s_waitcnt vmcnt(0)")
            flag_store(c, 6, 7, "s74", track=False)
            if PROF != 3: S_.stamp(c, 6)
            c.label(nf)
    c.e("s_add_u32 s60, s60, 1")
    c.e("s_cmp_lt_u32 s60, 2")
    c.e(f"s_cbranch_scc1 L_cloop")
    if PROF == 1: S_.stamp(c, 1)
    ns = L("nosw")
    c.e("s_waitcnt lgkmcnt(0)")
    c.e("s_nop 4")
    c.e(f"s_cmp_eq_u32 s{ROLE}, 0")
    c.e(f"s_cbranch_scc1 {ns}")
    for j in range(16): c.e(f"v_swap_b32 v{Y+j}, v{Y+16+j}")
    c.label(ns)
    c.e("v_lshlrev_b32 v5, 4, v2")
    c.e(f"v_add_u32 v5, {RED}, v5")
    c.e("s_lshl_b32 s60, s3, 12")
    c.e("v_add_u32 v6, s60, v5")
    c.e("s_xor_b32 s60, s3, 1")
    c.e("s_lshl_b32 s60, s60, 12")
    c.e("v_add_u32 v7, s60, v5")
    c.e("v_lshlrev_b32 v8, 5, v3")
    c.e("v_lshl_add_u32 v8, v4, 3, v8")
    c.e(f"s_lshl_b32 s60, s{CH}, 12")
    c.e(f"s_lshl_b32 s61, s{ROLE}, 11")
    c.e("s_sub_u32 s60, s60, s61")
    c.e(f"s_add_u32 s60, s60, {KV0 + 4088 - 1536}")
    c.e("v_sub_u32 v9, s60, v8")
    KVV, PR, U = 16, 32, 48
    for i in range(4):
        c.e(f"ds_read_b64 v[{KVV+2*i}:{KVV+2*i+1}], v9 offset:{(3-i)*512}")
    for i in range(4):
        c.e(f"ds_write_b128 v6, v[{Y+16+4*i}:{Y+16+4*i+3}] offset:{1024*i}")
    c.e(f"s_cmp_eq_u32 s{CH}, 0")
    c.e("s_cselect_b32 s60, 16, 0")
    c.e("s_lshl_b32 s79, s79, s60")
    c.e("s_and_b32 s79, s79, 0xffff0000")
    c.e("s_lshl_b32 s60, s2, 1")
    c.e(f"s_add_u32 s60, s60, s{CH}")
    c.e("s_lshl_b32 s60, s60, 12")
    c.e(f"s_lshl_b32 s61, s{ROLE}, 11")
    c.e("s_add_u32 s60, s60, s61")
    c.e("s_lshl_b32 s61, s3, 2")
    c.e("v_mov_b32 v10, s61")
    c.e("v_xor_b32 v11, 4, v10")
    c.e("v_mov_b32 v12, 1")
    c.e("s_waitcnt lgkmcnt(0)")
    c.e(f"ds_write_b32 v10, v12 offset:{LSF}")
    sp, sd = L("lsp"), L("lsd")
    c.e(f"s_mov_b32 s{SPIN}, {SPIN_MAX}")
    c.label(sp)
    c.e(f"ds_read_b32 v12, v11 offset:{LSF}")
    c.e("s_waitcnt lgkmcnt(0)")
    c.e("v_readfirstlane_b32 s61, v12")
    c.e("s_nop 3")
    c.e("s_cmp_eq_u32 s61, 1")
    c.e(f"s_cbranch_scc1 {sd}")
    c.e(f"s_sub_u32 s{SPIN}, s{SPIN}, 1")
    c.e(f"s_cbranch_scc0 {sp}")
    c.label(sd)
    for i in range(4):
        c.e(f"ds_read_b128 v[{PR+4*i}:{PR+4*i+3}], v7 offset:{1024*i}")
    for i in range(4):
        y = Y + 4*i
        k0, k1 = KVV+2*i, KVV+2*i+1
        c.e(f"v_and_b32 v{U}, 0xffff0000, v{k1}")
        c.e(f"v_lshlrev_b32 v{U+1}, 16, v{k1}")
        c.e(f"v_and_b32 v{U+2}, 0xffff0000, v{k0}")
        c.e(f"v_lshlrev_b32 v{U+3}, 16, v{k0}")
        for r in range(4):
            c.e(f"v_fmac_f32 v{y+r}, s79, v{U+r}")
    c.e("s_waitcnt lgkmcnt(0)")
    for i in range(4):
        y = Y + 4*i
        for r in range(4): c.e(f"v_add_f32 v{y+r}, v{y+r}, v{PR+4*i+r}")
        c.e(f"v_cvt_pk_bf16_f32 v{U+4+2*i}, v{y}, v{y+1}")
        c.e(f"v_cvt_pk_bf16_f32 v{U+5+2*i}, v{y+2}, v{y+3}")
        c.e(f"buffer_store_dwordx2 v[{U+4+2*i}:{U+5+2*i}], v8, s[{SA}:{SA+3}], s60 offen offset:{512*i} sc1")
    if PROF == 1: S_.stamp(c, 2)

    c.e("s_and_b32 s64, s3, 1")
    c.e("s_lshr_b32 s65, s3, 1")
    c.e(f"s_lshl_b32 s60, s{TT}, 6")
    c.e("s_lshl_b32 s61, s65, 5")
    c.e("s_add_u32 s60, s60, s61")
    c.e("v_add_u32 v5, s60, v3")
    VST = 26
    c.e(f"v_lshlrev_b32 v{VST}, 3, v5")
    ST2, XV = 8, 12
    c.e("s_nop 0")
    c.e(f"buffer_load_dwordx2 v[{ST2+2}:{ST2+3}], v{VST}, s[{FL}:{FL+3}], 0 offen offset:128 sc1")
    c.e(f"s_lshl_b32 s60, s{DT}, 7")
    c.e("s_lshl_b32 s61, s64, 6")
    c.e("s_add_u32 s60, s60, s61")
    c.e("v_lshlrev_b32 v6, 10, v5")
    c.e("v_add_u32 v6, s60, v6")
    c.e("v_lshl_add_u32 v7, v4, 3, v6")
    c.e("s_mov_b32 s61, 16384")
    for tb in range(2):
        for db in range(2):
            so = "0" if tb == 0 else "s61"
            c.e(f"buffer_load_dwordx2 v[{XV+4*tb+2*db}:{XV+4*tb+2*db+1}], v7, s[{SB}:{SB+3}], {so} offen offset:{32*db}")
    c.e(f"buffer_load_dwordx2 v[{ST2}:{ST2+1}], v{VST}, s[{FL}:{FL+3}], 0 offen sc1")
    VO = 20
    c.e("v_and_b32 v7, 1, v4")
    c.e(f"v_lshl_add_u32 v{VO}, v7, 5, v6")
    c.e("v_lshrrev_b32 v7, 1, v4")
    c.e(f"v_lshl_add_u32 v{VO}, v7, 4, v{VO}")
    VB, VA = 21, 22
    c.e("s_lshl_b32 s60, s65, 12")
    c.e("v_lshlrev_b32 v7, 4, v2")
    c.e(f"v_add_u32 v{VB}, s60, v7")
    c.e(f"v_add_u32 v{VB}, {HSA}, v{VB}")
    c.e("v_lshrrev_b32 v5, 2, v3")
    c.e("v_lshl_add_u32 v6, v4, 3, v5")
    c.e("v_lshlrev_b32 v6, 7, v6")
    c.e("v_lshrrev_b32 v5, 1, v5")
    c.e("v_and_b32 v7, 1, v4")
    c.e("v_lshl_or_b32 v5, v7, 1, v5")
    c.e("v_lshlrev_b32 v5, 1, v5")
    c.e("v_and_b32 v7, 3, v3")
    c.e("v_and_b32 v24, 1, v7")
    c.e("v_lshl_add_u32 v6, v24, 3, v6")
    c.e(f"v_add_u32 v6, {WS0}, v6")
    c.e("v_lshrrev_b32 v7, 1, v7")
    for db in range(2):
        c.e("s_lshl_b32 s60, s64, 2")
        c.e(f"s_add_u32 s60, s60, {2*db}")
        c.e("v_add_u32 v24, s60, v7")
        c.e("v_xor_b32 v24, v24, v5")
        c.e(f"v_lshl_add_u32 v{VA+db}, v24, 4, v6")
    F2 = [32, 96]
    AC2 = 64
    for j in range(16): c.e(f"v_mov_b32 v{AC2+j}, 0")
    VB2 = 25
    c.e(f"v_subrev_u32 v{VB2}, {HSA}, v{VB}")
    def reads2(st, slot, ks):
        f = F2[st]; Lr = []
        vb, hb = (VB, slot*8192) if slot < NH1 else (VB2, (slot-NH1)*8192)
        for db in range(2):
            for m in range(2):
                Lr.append(f"ds_read_b64_tr_b16 v[{f+8*ks+4*db+2*m}:{f+8*ks+4*db+2*m+1}], v{VA+db} offset:{slot*8192+4096*ks+512*m}")
        for tb in range(2):
            Lr.append(f"ds_read_b128 v[{f+16+8*ks+4*tb}:{f+16+8*ks+4*tb+3}], v{vb} offset:{hb+2048*tb+1024*ks}")
        return Lr
    def mfmas2(st, ks):
        f = F2[st]; Lm = []
        for db in range(2):
            for tb in range(2):
                a = AC2 + (2*db+tb)*4
                Lm.append(f"v_mfma_f32_16x16x32_bf16 v[{a}:{a+3}], v[{f+8*ks+4*db}:{f+8*ks+4*db+3}], v[{f+16+8*ks+4*tb}:{f+16+8*ks+4*tb+3}], v[{a}:{a+3}]")
        return Lm
    c.e("s_mov_b32 s60, 0")
    c.e("s_barrier")
    S_.stamp(c, 7)
    for ks in range(2):
        for r in reads2(0, 0, ks): c.e(r)
    c.label("L_g2loop")
    for u in range(8):
        st = u % 2
        for ks in range(2):
            c.e("s_waitcnt lgkmcnt(6)")
            M = mfmas2(st, ks); R_ = reads2(1-st, (u+1) % 8, ks)
            for k, m in enumerate(M):
                c.e(m)
                for _ in range(2):
                    if R_: c.e(R_.pop(0))
            assert not R_
        if u == 2:
            yd = L("ydrain")
            c.e("s_cmp_eq_u32 s60, 0")
            c.e(f"s_cbranch_scc0 {yd}")
            c.e("s_waitcnt vmcnt(0)")
            c.label(yd)
        c.e("s_barrier")
        if u == 3:
            c.e("s_cmp_eq_u32 s60, 3")
            c.e("s_cbranch_scc1 L_g2done")
    c.e("s_add_u32 s60, s60, 1")
    c.e("s_branch L_g2loop")
    c.label("L_g2done")
    c.e("s_waitcnt lgkmcnt(0)")
    S_.stamp(c, 8)
    c.e("v_lshrrev_b32 v5, 2, v3")
    c.e("v_lshl_add_u32 v5, v4, 2, v5")
    c.e("s_lshl_b32 s60, s64, 5")
    c.e("v_add_u32 v5, s60, v5")
    c.e("v_lshlrev_b32 v5, 7, v5")
    c.e("v_and_b32 v6, 3, v3")
    c.e("v_lshl_add_u32 v5, v6, 3, v5")
    c.e("s_lshl_b32 s60, s65, 6")
    c.e(f"s_add_u32 s60, s60, {YB}")
    c.e("v_add_u32 v5, s60, v5")
    YV = 128
    for tb in range(2):
        for db in range(2):
            c.e(f"ds_read_b64_tr_b16 v[{YV+4*tb+2*db}:{YV+4*tb+2*db+1}], v5 offset:{2048*db+32*tb}")
    lp, done = L("stp"), L("std")
    c.e(f"s_mov_b32 s{SPIN}, {SPIN_MAX}")
    c.label(lp)
    c.e(f"v_cmp_ne_u32 vcc, s{TAG}, v{ST2+1}")
    c.e(f"v_cmp_ne_u32 s[60:61], s{TAG}, v{ST2+3}")
    c.e("s_nop 1")
    c.e("s_or_b64 vcc, vcc, s[60:61]")
    c.e(f"s_cbranch_vccz {done}")
    c.e(f"s_sub_u32 s{SPIN}, s{SPIN}, 1")
    c.e(f"s_cbranch_scc1 {done}")
    c.e(f"buffer_load_dwordx2 v[{ST2}:{ST2+1}], v{VST}, s[{FL}:{FL+3}], 0 offen sc1")
    c.e(f"buffer_load_dwordx2 v[{ST2+2}:{ST2+3}], v{VST}, s[{FL}:{FL+3}], 0 offen offset:128 sc1")
    c.e("s_waitcnt vmcnt(0)")
    c.e(f"s_branch {lp}")
    c.label(done)
    RS = 40
    for tb in range(2):
        c.e(f"v_and_b32 v{ST2+2*tb+1}, 0xffff0000, v{ST2+2*tb}")
        c.e(f"v_lshlrev_b32 v{ST2+2*tb}, 16, v{ST2+2*tb}")
    for tb in range(2):
        c.e(f"v_rcp_f32 v{RS+2*tb}, v{ST2+2*tb+1}")
    c.e("s_waitcnt lgkmcnt(0)")
    XU, YU, P = 44, 48, 52
    c.e("s_mov_b32 s61, 16384")
    for tb in range(2):
        q = P + 4*tb
        for db in range(2):
            a = AC2 + (2*db+tb)*4
            x0 = XV+4*tb+2*db; y0 = YV+4*tb+2*db
            c.e(f"v_lshlrev_b32 v{XU}, 16, v{x0}"); c.e(f"v_and_b32 v{XU+1}, 0xffff0000, v{x0}")
            c.e(f"v_lshlrev_b32 v{XU+2}, 16, v{x0+1}"); c.e(f"v_and_b32 v{XU+3}, 0xffff0000, v{x0+1}")
            c.e(f"v_lshlrev_b32 v{YU}, 16, v{y0}"); c.e(f"v_and_b32 v{YU+1}, 0xffff0000, v{y0}")
            c.e(f"v_lshlrev_b32 v{YU+2}, 16, v{y0+1}"); c.e(f"v_and_b32 v{YU+3}, 0xffff0000, v{y0+1}")
            for h in range(2):
                xu, yu, aa = XU+2*h, YU+2*h, a+2*h
                c.e(f"v_pk_add_f32 v[{aa}:{aa+1}], v[{aa}:{aa+1}], v[{xu}:{xu+1}]")
                c.e(f"v_pk_add_f32 v[{xu}:{xu+1}], v[{xu}:{xu+1}], v[{ST2+2*tb}:{ST2+2*tb+1}] op_sel_hi:[1,0] neg_lo:[0,1] neg_hi:[0,1]")
                c.e(f"v_pk_mul_f32 v[{yu}:{yu+1}], v[{yu}:{yu+1}], v[{RS+2*tb}:{RS+2*tb+1}] op_sel_hi:[1,0]")
                c.e(f"v_pk_fma_f32 v[{aa}:{aa+1}], v[{xu}:{xu+1}], v[{yu}:{yu+1}], v[{aa}:{aa+1}]")
                c.e(f"v_cvt_pk_bf16_f32 v{q+2*db+h}, v{aa}, v{aa+1}")
        c.e("s_nop 1")
        c.e(f"v_permlane16_swap_b32 v{q}, v{q+2}")
        c.e(f"v_permlane16_swap_b32 v{q+1}, v{q+3}")
        so = "0" if tb == 0 else "s61"
        c.e(f"buffer_store_dwordx4 v[{q}:{q+3}], v{VO}, s[{SC}:{SC+3}], {so} offen")
    S_.stamp(c, 9)
    if PROF:
        c.e("s_waitcnt vmcnt(0)")
        S_.flush(c, 10, P_WS, 3)
    c.e("s_endpgm")

    l = p
    def SL(i):
        if PROF == 1: S_.stamp(l, i)
    l.vm = list(vmE)
    l.label("L_loader")
    if LPRIO: l.e(f"s_setprio {LPRIO}")
    CW, CH, HF_ = 60, 61, 62
    l.e(f"s_sub_u32 s{CW}, s3, 4")
    l.e(f"s_lshr_b32 s{CH}, s{CW}, 1")
    l.e(f"s_and_b32 s{HF_}, s{CW}, 1")
    srd(l, SA, P_Q, 2097152)
    l.e("v_lshlrev_b32 v9, 4, v2")
    l.e("s_lshl_b32 s64, s2, 13")
    l.e(f"s_lshl_b32 s65, s{CW}, 11")
    l.e("s_add_u32 s64, s64, s65")
    XR = 16
    l.vmem(f"buffer_load_dwordx4 v[{XR}:{XR+3}], v9, s[{SA}:{SA+3}], s64 offen", "xr")
    l.vmem(f"buffer_load_dwordx4 v[{XR+4}:{XR+7}], v9, s[{SA}:{SA+3}], s64 offen offset:1024", "xr")
    l.e("s_lshl_b32 s64, s2, 1")
    l.e(f"s_add_u32 s64, s64, s{CH}")
    l.e(f"s_lshl_b32 s64, s64, 12")
    l.e(f"s_add_u32 s{SB}, s{P_SK}, s64"); l.e(f"s_addc_u32 s{SB+1}, s{P_SK+1}, 0"); l.e(f"s_mov_b32 s{SB+2}, 4096"); l.e(f"s_mov_b32 s{SB+3}, 0x00020000")
    srd(l, SC, P_W1, 1835008)
    srd(l, SD_, P_WS, 2097152, add=WS_KVR)
    HQ = [24, 32]
    def h_loads(q):
        q.e(f"s_lshl_b32 s64, s{HF_}, 7")
        q.e("v_add_u32 v5, s64, v2")
        q.e("v_lshlrev_b32 v6, 4, v5")
        q.e("v_add_u32 v7, -8, v6")
        q.e("v_add_u32 v8, 1016, v6")
        q.vmem(f"buffer_load_dwordx2 v[{HQ[0]}:{HQ[0]+1}], v7, s[{SB}:{SB+3}], 0 offen", "h")
        q.vmem(f"buffer_load_dwordx4 v[{HQ[0]+2}:{HQ[0]+5}], v6, s[{SB}:{SB+3}], 0 offen", "h")
        q.vmem(f"buffer_load_dwordx2 v[{HQ[1]}:{HQ[1]+1}], v8, s[{SB}:{SB+3}], 0 offen", "h")
        q.vmem(f"buffer_load_dwordx4 v[{HQ[1]+2}:{HQ[1]+5}], v6, s[{SB}:{SB+3}], 0 offen offset:1024", "h")
    def stats(q):
        q.wait_vm("xr")
        E = 64; S = 80; Q = 88; O = 92
        for rw in range(2):
            for j in range(4):
                q.e(f"v_lshlrev_b32 v{E+8*rw+2*j}, 16, v{XR+4*rw+j}")
                q.e(f"v_and_b32 v{E+8*rw+2*j+1}, 0xffff0000, v{XR+4*rw+j}")
        for rw in range(2):
            b = E + 8*rw
            q.e(f"v_pk_add_f32 v[{S+2*rw}:{S+2*rw+1}], v[{b}:{b+1}], v[{b+2}:{b+3}]")
            q.e(f"v_pk_add_f32 v[{S+4+2*rw}:{S+4+2*rw+1}], v[{b+4}:{b+5}], v[{b+6}:{b+7}]")
        for rw in range(2):
            q.e(f"v_pk_add_f32 v[{S+2*rw}:{S+2*rw+1}], v[{S+2*rw}:{S+2*rw+1}], v[{S+4+2*rw}:{S+4+2*rw+1}]")
        for rw in range(2):
            q.e(f"v_add_f32 v{S+2*rw}, v{S+2*rw}, v{S+2*rw+1}")
        allreduce(q, [S, S+2], [S+4, S+5])
        for rw in range(2):
            q.e(f"v_mul_f32 v{S+2*rw}, 0x3b000000, v{S+2*rw}")
        for rw in range(2):
            b = E + 8*rw
            for j in range(4):
                q.e(f"v_pk_add_f32 v[{b+2*j}:{b+2*j+1}], v[{b+2*j}:{b+2*j+1}], v[{S+2*rw}:{S+2*rw+1}] op_sel_hi:[1,0] neg_lo:[0,1] neg_hi:[0,1]")
        for rw in range(2):
            b = E + 8*rw
            q.e(f"v_pk_mul_f32 v[{Q+2*rw}:{Q+2*rw+1}], v[{b}:{b+1}], v[{b}:{b+1}]")
            for j in range(1,4):
                q.e(f"v_pk_fma_f32 v[{Q+2*rw}:{Q+2*rw+1}], v[{b+2*j}:{b+2*j+1}], v[{b+2*j}:{b+2*j+1}], v[{Q+2*rw}:{Q+2*rw+1}]")
        for rw in range(2):
            q.e(f"v_add_f32 v{Q+2*rw}, v{Q+2*rw}, v{Q+2*rw+1}")
        allreduce(q, [Q, Q+2], [S+4, S+5])
        get_tag(q)
        for rw in range(2):
            q.e(f"v_mul_f32 v{Q+2*rw}, 0x3b000000, v{Q+2*rw}")
            q.e(f"v_cvt_pk_bf16_f32 v{Q+2*rw}, v{Q+2*rw}, v{Q+2*rw}")
            q.e(f"v_and_b32 v{Q+2*rw}, 0xffff0000, v{Q+2*rw}")
            q.e(f"v_add_f32 v{Q+2*rw}, 0x3727c5ac, v{Q+2*rw}")
            q.e(f"v_cvt_pk_bf16_f32 v{Q+2*rw}, v{Q+2*rw}, v{Q+2*rw}")
            q.e(f"v_and_b32 v{Q+2*rw}, 0xffff0000, v{Q+2*rw}")
            q.e(f"v_sqrt_f32 v{Q+2*rw}, v{Q+2*rw}")
            q.e("s_nop 0")
            q.e(f"v_cvt_pk_bf16_f32 v{O+2*rw}, v{S+2*rw}, v{Q+2*rw}")
            q.e(f"v_mov_b32 v{O+2*rw+1}, s{TAG}")
        q.e("s_lshl_b32 s64, s2, 6")
        q.e(f"s_lshl_b32 s65, s{CW}, 4")
        q.e("s_add_u32 s64, s64, s65")
        q.e("v_mov_b32 v10, 0")
        q.e("s_mov_b64 exec, 1")
        q.vmem(f"buffer_store_dwordx2 v[{O}:{O+1}], v10, s[{FL}:{FL+3}], s64 offen sc1", "sst")
        q.vmem(f"buffer_store_dwordx2 v[{O+2}:{O+3}], v10, s[{FL}:{FL+3}], s64 offen offset:8 sc1", "sst")
        q.e("s_mov_b64 exec, -1")
    def build_h(q):
        q.wait_vm("h")
        q.e("v_lshrrev_b32 v10, 2, v5")
        q.e("v_lshlrev_b32 v10, 8, v10")
        q.e("v_and_b32 v11, 3, v5")
        q.e("v_lshl_add_u32 v10, v11, 4, v10")
        q.e(f"s_lshl_b32 s64, s{CH}, 14")
        q.e(f"s_add_u32 s64, s64, {H0}")
        q.e("v_add_u32 v10, s64, v10")
        for grp in range(2):
            b = HQ[grp]; C = 64
            for m in range(4):
                q.e(f"v_alignbit_b32 v{C+m}, v{b+2+m}, v{b+1+m}, 16")
                q.e(f"v_alignbit_b32 v{C+4+m}, v{b+1+m}, v{b+m}, 16")
                q.e(f"v_mov_b32 v{C+8+m}, v{b+1+m}")
            o = 4096*grp
            q.e(f"ds_write_b128 v10, v[{b+2}:{b+5}] offset:{o}")
            q.e(f"ds_write_b128 v10, v[{C}:{C+3}] offset:{o+64}")
            q.e(f"ds_write_b128 v10, v[{C+8}:{C+11}] offset:{o+128}")
            q.e(f"ds_write_b128 v10, v[{C+4}:{C+7}] offset:{o+192}")
            q.e("s_nop 1")
    CA0, CA1, CF, CAC = 100, 101, 104, 112
    def colsum_setup(q):
        w1_lane_offset(q, CA0, 102)
        q.e(f"v_add_u32 v{CA0}, {SLOT0+16384}, v{CA0}")
        q.e(f"s_add_u32 s64, s{CW}, 4")
        q.e("s_min_u32 s64, s64, 6")
        q.e("s_lshl_b32 s64, s64, 5")
        q.e(f"v_add_u32 v{CA1}, s64, v{CA0}")
        q.e(f"s_lshl_b32 s64, s{CW}, 5")
        q.e(f"v_add_u32 v{CA0}, s64, v{CA0}")
        for j in range(4): q.e(f"v_mov_b32 v{CAC+j}, 0")
        q.e("s_mov_b32 s77, 0x3f803f80")
    def colsum_reads(q, s):
        k = 0
        for hs in range(2):
            for j, va in enumerate((CA0, CA1)):
                for m in range(2):
                    q.e(f"ds_read_b64_tr_b16 v[{120+2*k}:{120+2*k+1}], v{va} offset:{7168*hs+1792*m}")
                    k += 1
        d = SLOTSZ if s % 4 != 3 else -3*SLOTSZ
        q.e(f"v_add_u32 v{CA0}, {d & 0xffffffff}, v{CA0}")
        q.e(f"v_add_u32 v{CA1}, {d & 0xffffffff}, v{CA1}")
    def colsum_dots(q):
        q.e("s_waitcnt lgkmcnt(0)")
        k = 0
        for hs in range(2):
            for j in range(2):
                for m in range(2):
                    q.e(f"v_dot2c_f32_bf16 v{CAC+2*j}, s77, v{120+2*k}")
                    q.e(f"v_dot2c_f32_bf16 v{CAC+2*j+1}, s77, v{120+2*k+1}")
                    k += 1
    def colsum_finish(q):
        q.e("s_nop 2")
        for j in range(2): q.e(f"v_add_f32 v{CAC+2*j}, v{CAC+2*j}, v{CAC+2*j+1}")
        rowreduce(q, [CAC, CAC+2], [CAC+1, CAC+3])
        q.e("v_lshlrev_b32 v102, 2, v3")
        q.e(f"s_lshl_b32 s64, s{CW}, 6")
        q.e("v_add_u32 v103, s64, v102")
        q.e(f"ds_write_b32 v103, v{CAC} offset:{CSB}")
        q.e(f"s_add_u32 s64, s{CW}, 4")
        q.e("s_min_u32 s64, s64, 6")
        q.e("s_lshl_b32 s64, s64, 6")
        q.e("v_add_u32 v103, s64, v102")
        q.e(f"ds_write_b32 v103, v{CAC+2} offset:{CSB}")
    def kv_dma(q):
        q.e("s_lshl_b32 s64, s2, 1")
        q.e(f"s_add_u32 s64, s64, s{CW}")
        q.e("s_lshl_b32 s65, s64, 12")
        q.e(f"s_lshl_b32 s64, s{CW}, 12")
        q.e(f"s_add_u32 m0, s64, {KV0}")
        for j in range(4):
            if j: q.e("s_add_u32 m0, m0, 1024")
            q.e("s_add_u32 s65, s65, 1024" if j else "s_nop 0")
            q.e(f"buffer_load_dwordx4 v9, s[{SD_}:{SD_+3}], s65 offen sc1 lds")
    def kv_flag_addr(q):
        q.e("v_lshlrev_b32 v12, 10, v2")
        q.e("s_lshr_b32 s65, s2, 5")
        q.e("s_lshl_b32 s65, s65, 7")
        q.e(f"s_add_u32 s65, s65, {WS_PF}")

    def build_h_part(q, grp):
        if grp == 0:
            q.wait_vm("h")
            q.e("v_lshrrev_b32 v10, 2, v5")
            q.e("v_lshlrev_b32 v10, 8, v10")
            q.e("v_and_b32 v6, 3, v5")
            q.e("v_lshl_add_u32 v10, v6, 4, v10")
            q.e(f"s_lshl_b32 s64, s{CH}, 14")
            q.e(f"s_add_u32 s64, s64, {H0}")
            q.e("v_add_u32 v10, s64, v10")
        b = HQ[grp]; C = 64
        for m in range(4):
            q.e(f"v_alignbit_b32 v{C+m}, v{b+2+m}, v{b+1+m}, 16")
            q.e(f"v_alignbit_b32 v{C+4+m}, v{b+1+m}, v{b+m}, 16")
            q.e(f"v_mov_b32 v{C+8+m}, v{b+1+m}")
        o = 4096*grp
        q.e(f"ds_write_b128 v10, v[{b+2}:{b+5}] offset:{o}")
        q.e(f"ds_write_b128 v10, v[{C}:{C+3}] offset:{o+64}")
        q.e(f"ds_write_b128 v10, v[{C+8}:{C+11}] offset:{o+128}")
        q.e(f"ds_write_b128 v10, v[{C+4}:{C+7}] offset:{o+192}")
    def dot_list():
        D = []; k = 0
        for hs in range(2):
            for j in range(2):
                for m in range(2):
                    D.append(f"v_dot2c_f32_bf16 v{CAC+2*j}, s77, v{120+2*k}")
                    D.append(f"v_dot2c_f32_bf16 v{CAC+2*j+1}, s77, v{120+2*k+1}")
                    k += 1
        return D
    def g1_loader(q, issue, is_x):
        issue(0, None); issue(1, None)
        colsum_setup(q)
        issue(2, None)
        for s in range(8):
            if s == 7 and is_x:
                q.e("s_waitcnt vmcnt(0)")
                q.e(f"v_cmp_ne_u32 vcc, s{TAG}, v13")
                q.e("s_nop 1")
                q.e("s_mov_b32 vcc_hi, 0")
                q.e("s_cmp_eq_u64 vcc, 0")
                q.e("s_cselect_b32 s78, 1, 0")
                ok = L("stok")
                q.e(f"v_cmp_ne_u32 vcc, s{TAG}, v15")
                q.e("s_nop 1")
                q.e(f"s_cbranch_vccz {ok}")
                q.e("v_lshlrev_b32 v11, 3, v2")
                poll(q, [(11, "s73", 14, 2, True)])
                q.label(ok)
                q.vm = []
            else:
                q.wait_vm(f"s{s}")
            q.e("s_barrier")
            if PROF == 2: S_.stamp(q, 1 + s)
            if s == 7 and is_x:
                nk = L("nokv")
                q.e("s_cmp_eq_u32 s78, 1")
                q.e(f"s_cbranch_scc0 {nk}")
                kv_dma(q)
                q.label(nk)
            colsum_reads(q, s)
            if s <= 4:
                issue(s+3, dot_list())
            if s == 0: stats(q)
            if s == 1: h_loads(q)
            if s == 2 and is_x:
                sk = L("nopf")
                q.e(f"s_cmp_eq_u32 s{CW}, 0")
                q.e(f"s_cbranch_scc0 {sk}")
                q.e("s_lshl_b32 s64, s2, 7")
                q.e(f"s_add_u32 s64, s64, {WS_PF}")
                flag_store(q, 13, 12, "s64", track=False)
                q.label(sk)
            if s == 5 and is_x:
                q.e(f"s_lshl_b32 s64, s{RB}, 7")
                q.e(f"s_lshl_b32 s73, s{CW}, 6")
                q.e("s_add_u32 s64, s64, s73")
                q.e("s_lshl_b32 s73, s64, 3")
                q.e("v_lshlrev_b32 v11, 3, v2")
                q.vmem(f"buffer_load_dwordx2 v[14:15], v11, s[{FL}:{FL+3}], s73 offen sc1", "pl")
            if s == 6 and is_x:
                kv_flag_addr(q)
                q.vmem(f"buffer_load_dword v13, v12, s[{FL}:{FL+3}], s65 offen sc1", "pl")
            if s == 7 and is_x:
                q.e("v_and_b32 v15, 0xffff0000, v14")
                q.e("v_lshlrev_b32 v14, 16, v14")
                q.e(f"s_lshl_b32 s64, s{CW}, 9")
                q.e("v_lshl_add_u32 v11, v2, 3, s64")
                q.e(f"ds_write_b64 v11, v[14:15] offset:{STB}")
                q.e("v_mov_b32 v16, 0"); q.e("v_mov_b32 v17, 0")
                q.e("v_mov_b32 v11, 0")
                q.e(f"ds_write_b64 v11, v[16:17] offset:{LSF}")
                q.e(f"ds_write_b64 v11, v[16:17] offset:{LSF+8}")
            if s > 4:
                q.e("s_waitcnt lgkmcnt(0)")
                for d in dot_list(): q.e(d)
            if s == 5: build_h_part(q, 0)
            if s == 6: build_h_part(q, 1)
            if s == 7: colsum_finish(q)
            if s >= 5: q.e("s_waitcnt lgkmcnt(0)")
        q.e("s_barrier")

    l.e(f"s_cmp_ge_u32 s{CW}, 2")
    l.e(f"s_cbranch_scc1 L_wload")
    vm_save = list(l.vm)
    l.e("v_lshrrev_b32 v12, 3, v2")
    l.e("v_and_b32 v13, 7, v2")
    l.e("v_xor_b32 v13, v13, v12")
    l.e("v_lshlrev_b32 v13, 4, v13")
    l.e("v_lshl_add_u32 v48, v12, 10, v13")
    l.e(f"s_lshl_b32 s66, s{RB}, 7")
    l.e(f"s_lshl_b32 s67, s{CW}, 6")
    l.e("s_add_u32 s66, s66, s67")
    l.e("s_lshl_b32 s66, s66, 10")
    l.e(f"s_lshl_b32 s67, s{CW}, 13")
    def sprinkle(i, D):
        if D is None: return
        if i == 1: l.e("s_waitcnt lgkmcnt(0)")
        if i >= 1:
            for _ in range(3):
                if D: l.e(D.pop(0))
    def issue_x(s, D):
        l.e(f"s_add_u32 s68, s66, {128*s}")
        l.e(f"s_add_u32 m0, s67, {SLOT0 + (s%4)*SLOTSZ}")
        for i in range(8):
            if i:
                l.e("s_add_u32 m0, m0, 1024")
                l.e("s_add_u32 s68, s68, 8192")
            else:
                l.e("s_nop 0")
            l.vmem(f"buffer_load_dwordx4 v48, s[{SA}:{SA+3}], s68 offen lds", f"s{s}")
            sprinkle(i, D)
        if D:
            for d in D: l.e(d)
    g1_loader(l, issue_x, True)
    SL(1)
    VW2, STB0 = 56, 64
    def w2_setup():
        srd(l, SC, P_W2, 1835008)
        w2_voffsets(l, VW2, t=58)
        l.e(f"s_lshl_b32 s66, s{CW}, 14")
        l.e(f"s_lshl_b32 s64, s{DT}, 7")
        l.e("s_add_u32 s66, s66, s64")
        l.e(f"s_lshl_b32 s67, s{CW}, 11")
        l.e(f"s_add_u32 s67, s67, {WS0}")
        l.e("v_lshlrev_b32 v60, 4, v2")
        l.e("v_add_u32 v60, s67, v60")
    def w2_next():
        l.e("s_add_u32 s71, s71, 1")
        l.e("s_add_u32 s72, s72, 65536")
        l.e("s_cmp_eq_u32 s71, 28")
        l.e("s_cselect_b32 s72, s66, s72")
        l.e("s_cselect_b32 s71, 0, s71")
    def w2_ring():
        l.e(f"s_mov_b32 s71, s{O2}")
        l.e(f"s_lshl_b32 s72, s{O2}, 16")
        l.e("s_add_u32 s72, s72, s66")
        l.e("s_mov_b32 s73, s67")
        l.e("s_mov_b32 s70, 0")
        lab = L("w2ring")
        l.label(lab)
        l.e("s_mov_b32 m0, s73")
        l.e("s_add_u32 s64, s72, 8192")
        l.e(f"buffer_load_dwordx4 v{VW2}, s[{SC}:{SC+3}], s72 offen lds")
        l.e("s_add_u32 m0, m0, 1024")
        l.e("s_add_u32 s73, s73, 8192")
        l.e(f"buffer_load_dwordx4 v{VW2+1}, s[{SC}:{SC+3}], s64 offen lds")
        w2_next()
        l.e("s_add_u32 s70, s70, 1")
        l.e(f"s_cmp_lt_u32 s70, {NWS}")
        l.e(f"s_cbranch_scc1 {lab}")
    def w2_stash():
        for st in range(NWS, 28):
            r = STB0 + 8*(st-NWS)
            l.e("s_add_u32 s64, s72, 8192")
            l.e(f"buffer_load_dwordx4 v[{r}:{r+3}], v{VW2}, s[{SC}:{SC+3}], s72 offen")
            l.e(f"buffer_load_dwordx4 v[{r+4}:{r+7}], v{VW2+1}, s[{SC}:{SC+3}], s64 offen")
            if st < 27: w2_next()
    def w2_write(st):
        r = STB0 + 8*(st-NWS); o = (st % NWS)*8192
        l.e(f"ds_write_b128 v60, v[{r}:{r+3}] offset:{o}")
        l.e(f"ds_write_b128 v60, v[{r+4}:{r+7}] offset:{o+1024}")
    w2_setup()
    kd = L("kvdone")
    l.e("s_cmp_eq_u32 s78, 1")
    l.e(f"s_cbranch_scc1 {kd}")
    kv_flag_addr(l)
    poll(l, [(12, "s65", 13, 1, False)])
    kv_dma(l)
    l.label(kd)
    w2_ring()
    l.e(f"s_waitcnt vmcnt({2*NWS})")
    SL(2)
    l.e("s_barrier")
    w2_stash()
    srd(l, SE, P_WS, H_BYTES, add=WS_H)
    l.e("v_lshrrev_b32 v5, 1, v2")
    l.e("v_and_b32 v5, 15, v5")
    l.e("v_lshlrev_b32 v5, 2, v5")
    l.e("v_and_b32 v6, 1, v2")
    l.e("v_add_u32 v5, v5, v6")
    l.e("v_lshlrev_b32 v11, 7, v5")
    l.e(f"s_lshr_b32 s64, s{TT}, 1")
    l.e("s_lshl_b32 s64, s64, 6")
    l.e(f"s_and_b32 s65, s{TT}, 1")
    l.e("s_lshl_b32 s65, s65, 1")
    l.e("s_add_u32 s64, s64, s65")
    l.e("s_lshl_b32 s64, s64, 7")
    l.e(f"s_add_u32 s70, s64, {WS_HF}")
    l.e("v_lshlrev_b32 v12, 4, v2")
    l.e(f"s_lshl_b32 s68, s{TT}, 2")
    l.e(f"s_lshl_b32 s64, s{CW}, 1")
    l.e("s_add_u32 s68, s68, s64")
    l.e("s_mul_i32 s66, s68, 57344")
    l.e(f"s_mov_b32 s71, s{O2}")
    l.e(f"s_lshl_b32 s68, s{O2}, 11")
    l.e("s_add_u32 s68, s68, s66")
    l.e(f"s_lshl_b32 s69, s{CW}, 12")
    poll(l, [(11, "s70", 14, 1, True)])
    SL(3)
    def hslot(st):
        k = st % NHS
        return HSA + k*8192 if k < NH1 else (k-NH1)*8192
    def issue_h(st):
        l.e(f"s_add_u32 m0, s69, {hslot(st)}")
        l.e("s_add_u32 s64, s68, 1024")
        l.e(f"buffer_load_dwordx4 v12, s[{SE}:{SE+3}], s68 offen{HSC} lds")
        l.e("s_add_u32 m0, m0, 1024")
        l.e("s_add_u32 s65, s68, 57344")
        l.e(f"buffer_load_dwordx4 v12, s[{SE}:{SE+3}], s64 offen{HSC} lds")
        l.e("s_add_u32 m0, m0, 1024")
        l.e("s_add_u32 s64, s64, 57344")
        l.e(f"buffer_load_dwordx4 v12, s[{SE}:{SE+3}], s65 offen{HSC} lds")
        l.e("s_add_u32 m0, m0, 1024")
        l.e("s_add_u32 s68, s68, 2048")
        l.e(f"buffer_load_dwordx4 v12, s[{SE}:{SE+3}], s64 offen{HSC} lds")
        l.e("s_add_u32 s71, s71, 1")
        l.e("s_cmp_eq_u32 s71, 28")
        l.e("s_cselect_b32 s68, s66, s68")
        l.e("s_cselect_b32 s71, 0, s71")
    for st in range(NH1): issue_h(st)
    l.e(f"s_waitcnt vmcnt({4*(NH1-2)})")
    l.e("s_barrier")
    SL(4)
    for st in range(NH1, NHS): issue_h(st)
    issued = NHS - 1
    for j in range(28):
        if j + 2 <= 27:
            l.e(f"s_waitcnt vmcnt({4*(issued - (j+2))}) lgkmcnt({2 if j + NWS - 1 <= 27 else 0})")
        l.e("s_barrier")
        if j + NHS <= 27:
            issue_h(j + NHS); issued = j + NHS
        if j + NWS <= 27:
            w2_write(j + NWS)
        if j == 2:
            ny = L("noyf")
            l.e(f"s_cmp_eq_u32 s{CW}, 0")
            l.e(f"s_cbranch_scc0 {ny}")
            l.e("s_lshl_b32 s64, s2, 7")
            l.e(f"s_add_u32 s64, s64, {WS_YF}")
            flag_store(l, 14, 13, "s64", track=False)
            l.label(ny)
            SL(5)
        if j == 11: SL(6)
        if j == 19: SL(7)
    ne = L("noe")
    l.e("s_cmp_eq_u32 s2, 0")
    l.e(f"s_cbranch_scc0 {ne}")
    l.e(f"s_cmp_eq_u32 s{CW}, 0")
    l.e(f"s_cbranch_scc0 {ne}")
    l.e("v_lshlrev_b32 v11, 7, v2")
    for j in range(4): l.e(f"s_mov_b32 s{64+j}, {WS_PF + 8192*j}")
    poll(l, [(11, f"s{64+j}", 14+j, 1, True) for j in range(4)])
    l.e(f"s_mov_b32 s64, {WS_E}")
    flag_store(l, 13, 14, "s64")
    l.label(ne)
    SL(8)
    if PROF: S_.flush(l, 9, P_WS, 3)
    l.e("s_endpgm")

    l.label("L_wload")
    l.vm = list(vm_save)
    np_ = L("nopre")
    l.e(f"s_cmp_eq_u32 s{CW}, 3")
    l.e(f"s_cbranch_scc0 {np_}")
    l.e("s_getpc_b64 s[64:65]")
    l.label("L_pc")
    l.e("v_lshlrev_b32 v12, 7, v2")
    l.e("s_sub_u32 s64, s64, L_pc-" + KN)
    l.e("s_subb_u32 s65, s65, 0")
    for j in range(CODE_LINES):
        l.e(f"v_add_u32 v13, {8192*j}, v12")
        l.e(f"v_min_u32 v13, L_code_end-{KN}-4, v13")
        l.e("global_load_dword v178, v13, s[64:65]")
    l.label(np_)
    l.e(f"s_sub_u32 s67, s{CW}, 2")
    VOW = 48
    for i in range(7):
        l.e(f"v_add_u32 v12, {64*i}, v2")
        l.e("v_mul_u32_u24 v13, 4682, v12")
        l.e("v_lshrrev_b32 v13, 16, v13")
        l.e("v_mul_u32_u24 v14, 14, v13")
        l.e("v_sub_u32 v14, v12, v14")
        l.e("v_and_b32 v15, 0x13, v13")
        l.e("v_and_b32 v12, 4, v13")
        l.e("v_lshl_or_b32 v15, v12, 1, v15")
        l.e("v_and_b32 v12, 8, v13")
        l.e("v_lshrrev_b32 v12, 1, v12")
        l.e("v_or_b32 v15, v15, v12")
        l.e("v_mul_u32_u24 v15, 3584, v15")
        l.e(f"v_lshl_add_u32 v{VOW+i}, v14, 4, v15")
    l.e("s_mul_i32 s66, s67, 114688")
    l.e(f"s_mul_i32 s68, s{FT}, 224")
    l.e("s_add_u32 s66, s66, s68")
    l.e("s_mul_i32 s67, s67, 7168")
    def issue_w(s, D):
        l.e(f"s_add_u32 s68, s66, {s*64*3584}")
        l.e(f"s_add_u32 m0, s67, {SLOT0 + (s%4)*SLOTSZ + 16384}")
        for i in range(7):
            if i: l.e("s_add_u32 m0, m0, 1024")
            l.e("s_nop 0")
            l.vmem(f"buffer_load_dwordx4 v{VOW+i}, s[{SC}:{SC+3}], s68 offen lds", f"s{s}")
            sprinkle(i, D)
        if D:
            for d in D: l.e(d)
    g1_loader(l, issue_w, False)
    SL(1)
    w2_setup()
    w2_ring()
    SL(2)
    l.e("s_barrier")
    w2_stash()
    srd(l, SB, P_WS, 2097152, add=WS_YT)
    l.e("v_lshrrev_b32 v10, 3, v2")
    l.e("v_lshlrev_b32 v10, 12, v10")
    l.e("v_and_b32 v11, 7, v2")
    l.e("v_lshl_add_u32 v10, v11, 4, v10")
    l.e("v_and_b32 v11, 31, v2")
    l.e("v_lshlrev_b32 v11, 7, v11")
    l.e(f"s_lshl_b32 s64, s{DT}, 12")
    l.e(f"s_add_u32 s70, s64, {WS_YF}")
    l.e(f"s_sub_u32 s65, s{CW}, 2")
    l.e(f"s_lshl_b32 s73, s{DT}, 18")
    l.e(f"s_lshl_b32 s64, s{TT}, 7")
    l.e("s_add_u32 s73, s73, s64")
    l.e("s_lshl_b32 s64, s65, 17")
    l.e("s_add_u32 s73, s73, s64")
    l.e("s_lshl_b32 s64, s65, 12")
    l.e(f"s_add_u32 s69, s64, {YB}")
    l.e("s_waitcnt vmcnt(0)")
    SL(3)
    l.e("s_barrier")
    for j in range(28):
        if j == 20:
            ok = L("yok")
            l.e("s_waitcnt vmcnt(0)")
            l.e(f"v_cmp_ne_u32 vcc, s{TAG}, v14")
            l.e("s_nop 1")
            l.e(f"s_cbranch_vccz {ok}")
            poll(l, [(11, "s70", 14, 1, True)])
            l.label(ok)
            l.e("s_mov_b32 m0, s69")
            for jj in range(4):
                if jj:
                    l.e("s_add_u32 m0, m0, 1024")
                    l.e("s_add_u32 s73, s73, 32768")
                else:
                    l.e("s_nop 0")
                l.e(f"buffer_load_dwordx4 v10, s[{SB}:{SB+3}], s73 offen sc1 lds")
        if j == 27: l.e("s_waitcnt vmcnt(0)")
        if 1 <= j <= 29 - NWS: l.e(f"s_waitcnt lgkmcnt({2 if j + NWS - 1 <= 27 else 0})")
        l.e("s_barrier")
        if j + NWS <= 27:
            w2_write(j + NWS)
        if j == 14:
            l.e(f"buffer_load_dword v14, v11, s[{FL}:{FL+3}], s70 offen sc1")
    SL(8)
    if PROF: S_.flush(l, 9, P_WS, 3)
    l.label("L_end")
    return "\n".join(x for x in p.text().split("\n") if x.strip() != "None")

def build():
    body = gen()
    hdr = open("cdna_kernels/" + NAME + ".s.ref").read().split("\n")
    out = []
    for line in hdr:
        if line.startswith("; @launch"):
            out.append("; @launch grid=(256,1,1) block=(512,1,1) lds=163840"); continue
        if line.startswith(";"): out.append(line)
        else: break
    out.append('.amdgcn_target "amdgcn-amd-amdhsa--gfx950"')
    code, desc = kernel(KN, body, vgpr=224, sgpr=102 if PROF else 96)
    i = code.rindex("s_endpgm")
    code = code[:i] + "s_endpgm\nL_code_end:\n"
    return "\n".join(out) + "\n" + code + desc

if __name__ == "__main__":
    dst = sys.argv[1] if len(sys.argv) > 1 else "v6.s"
    open(dst, "w").write(build())
    print("wrote", dst)
```

```python
import sys, os
from asmlib import *
from gen_layout import *
PROF = int(os.environ.get("PROF", "0"))
NOPK = int(os.environ.get("NOPK", "0"))
DIAG = os.environ.get("DIAG", "")
NAME = "parallel_sum__ssm_conv_h3__dense_activation_silu__prompt"
KN = NAME + "_kernel"

KV0, H0 = 0, 8192
SLOT0, SLOTSZ = 40960, 30720
CSB = 40960
STB = 40960 + 512
YB = 40960
HSA, NH1, NHS = 49152, 4, 8
RED = 81920
LSF = 40960 + 1536
WS0, NWS = 98304, 8

P_Q, P_K, P_V, P_SH, P_SK, P_SD, P_W1, P_W2, P_OUT, P_WS = 4, 6, 8, 10, 12, 14, 18, 20, 22, 26
FL = 28
TAG = 32
XCD, II, RB, FT, TT, DT, SPIN = 33, 34, 35, 36, 37, 38, 39
SA, SB, SC, SD_, SE = 40, 44, 48, 52, 56
SPIN_MAX = 200000
CODE_LINES = 4
LPRIO = int(os.environ.get("LPRIO", "0"))
ROT2 = int(os.environ.get("ROT2", "1"))
O2 = 16
STASH = int(os.environ.get("STASH", "1"))
HSC = " sc1" if int(os.environ.get("HSC1", "0")) else ""

uid = [0]
def L(prefix):
    uid[0] += 1
    return f"L_{prefix}_{uid[0]}"

def allreduce(p, regs, tmp):
    for mod in ("quad_perm:[1,0,3,2]", "quad_perm:[2,3,0,1]", "row_half_mirror", "row_mirror"):
        p.e("s_nop 1")
        for r in regs:
            p.e(f"v_add_f32_dpp v{r}, v{r}, v{r} {mod} row_mask:0xf bank_mask:0xf")
    rowreduce(p, regs, tmp)

def rowreduce(p, regs, tmp):
    for sw in ("v_permlane16_swap_b32", "v_permlane32_swap_b32"):
        for r, t in zip(regs, tmp): p.e(f"v_mov_b32 v{t}, v{r}")
        p.e("s_nop 1")
        for r, t in zip(regs, tmp): p.e(f"{sw} v{t}, v{r}")
        p.e("s_nop 1")
        for r, t in zip(regs, tmp): p.e(f"v_add_f32 v{r}, v{r}, v{t}")

def poll(p, items, soft=None):
    lp, done = L("poll"), L("pdone")
    allit = list(items) + ([soft] if soft else [])
    p.e(f"s_mov_b32 s{SPIN}, {SPIN_MAX}")
    p.label(lp)
    for (va, so, vt, w, full) in allit:
        if w == 1: p.e(f"buffer_load_dword v{vt}, v{va}, s[{FL}:{FL+3}], {so} offen sc1")
        else: p.e(f"buffer_load_dwordx2 v[{vt}:{vt+1}], v{va}, s[{FL}:{FL+3}], {so} offen sc1")
    p.e("s_waitcnt vmcnt(0)")
    if soft:
        (va, so, vt, w, full) = soft
        p.e(f"v_cmp_ne_u32 vcc, s{TAG}, v{vt + (w-1)}")
        p.e("s_nop 1")
        if not full: p.e("s_mov_b32 vcc_hi, 0")
        p.e("s_cmp_eq_u64 vcc, 0")
        p.e("s_cselect_b32 s78, 1, 0")
    for k, (va, so, vt, w, full) in enumerate(items):
        p.e(f"v_cmp_ne_u32 vcc, s{TAG}, v{vt + (w-1)}")
        p.e("s_nop 1")
        if not full: p.e("s_mov_b32 vcc_hi, 0")
        if k == 0: p.e("s_mov_b64 s[74:75], vcc")
        else: p.e("s_or_b64 s[74:75], s[74:75], vcc")
    p.e("s_cmp_eq_u64 s[74:75], 0")
    p.e(f"s_cbranch_scc1 {done}")
    p.e(f"s_sub_u32 s{SPIN}, s{SPIN}, 1")
    p.e(f"s_cbranch_scc1 {done}")
    p.e("s_sleep 1")
    p.e(f"s_branch {lp}")
    p.label(done)
    p.vm = []

def flag_store(p, vaddr, vdata, soff, track=True):
    p.e(f"v_mov_b32 v{vdata}, s{TAG}")
    p.e(f"v_mov_b32 v{vaddr}, 0")
    p.e("s_mov_b64 exec, 1")
    ins = f"buffer_store_dword v{vdata}, v{vaddr}, s[{FL}:{FL+3}], {soff} offen sc1"
    if track: p.vmem(ins, "fl")
    else: p.e(ins)
    p.e("s_mov_b64 exec, -1")

def w2_voffsets(q, dst, t=5):
    q.e(f"v_lshrrev_b32 v{t}, 3, v2")
    q.e(f"v_lshrrev_b32 v{t+1}, 1, v{t}")
    q.e(f"v_and_b32 v{t+1}, 1, v{t+1}")
    q.e(f"v_and_b32 v{t+2}, 7, v2")
    for par in range(2):
        q.e(f"v_or_b32 v{t+3}, {2*par}, v{t+1}")
        q.e(f"v_lshlrev_b32 v{t+3}, 1, v{t+3}")
        q.e(f"v_xor_b32 v{t+3}, v{t+3}, v{t+2}")
        q.e(f"v_lshlrev_b32 v{t+3}, 4, v{t+3}")
        q.e(f"v_lshl_add_u32 v{dst+par}, v{t}, 10, v{t+3}")

def w1_lane_offset(q, dst, t):
    q.e(f"v_lshrrev_b32 v{dst}, 1, v4")
    q.e(f"v_lshlrev_b32 v{dst}, 4, v{dst}")
    q.e(f"v_and_b32 v{t}, 1, v4")
    q.e(f"v_lshl_add_u32 v{dst}, v{t}, 2, v{dst}")
    q.e(f"v_lshrrev_b32 v{t}, 2, v3")
    q.e(f"v_add_u32 v{dst}, v{dst}, v{t}")
    q.e(f"v_mul_u32_u24 v{dst}, 224, v{dst}")
    q.e(f"v_and_b32 v{t}, 3, v3")
    q.e(f"v_lshl_add_u32 v{dst}, v{t}, 3, v{dst}")

def gen():
    p = Prog(); S_ = Stamps(PROF, 0)
    S_.stamp(p, 0)
    p.e("s_cmp_ge_u32 s2, 256")
    p.e(f"s_cbranch_scc1 L_end")
    p.e("s_load_dwordx16 s[4:19], s[0:1], 0")
    p.e("s_load_dwordx8 s[20:27], s[0:1], 64")
    p.e("v_lshrrev_b32 v1, 6, v0")
    p.e("v_and_b32 v2, 63, v0")
    p.e("v_readfirstlane_b32 s3, v1")
    p.e(f"s_and_b32 s{XCD}, s2, 7")
    p.e(f"s_lshr_b32 s{II}, s2, 3")
    p.e(f"s_and_b32 s60, s{II}, 3")
    p.e(f"s_lshr_b32 s61, s{II}, 2")
    p.e(f"s_and_b32 s{RB}, s{XCD}, 3")
    p.e(f"s_lshl_b32 s{RB}, s{RB}, 2")
    p.e(f"s_add_u32 s{RB}, s{RB}, s60")
    p.e(f"s_lshr_b32 s{FT}, s{XCD}, 2")
    p.e(f"s_lshl_b32 s{FT}, s{FT}, 3")
    p.e(f"s_add_u32 s{FT}, s{FT}, s61")
    p.e(f"s_lshl_b32 s{TT}, s{XCD}, 2")
    p.e(f"s_add_u32 s{TT}, s{TT}, s60")
    p.e(f"s_mov_b32 s{DT}, s61")
    p.e("v_and_b32 v3, 15, v2")
    p.e("v_lshrrev_b32 v4, 4, v2")
    p.e("v_mov_b32 v5, 0")
    p.e(f"s_mov_b32 s62, {WS_E}")
    p.e("s_waitcnt lgkmcnt(0)")
    if ROT2:
        p.e(f"s_mul_i32 s{O2}, s60, 7")
        p.e(f"s_mul_i32 s63, s61, 7")
        p.e(f"s_lshr_b32 s63, s63, 1")
        p.e(f"s_add_u32 s{O2}, s{O2}, s63")
        p.e(f"s_cmp_ge_u32 s{O2}, 28")
        p.e(f"s_cselect_b32 s63, 28, 0")
        p.e(f"s_sub_u32 s{O2}, s{O2}, s63")
    else:
        p.e(f"s_mov_b32 s{O2}, 0")
    srd(p, FL, P_WS, WS_FLSZ)
    p.vmem(f"buffer_load_dword v110, v5, s[{FL}:{FL+3}], s62 offen sc1", "E")
    p.e("s_cmp_ge_u32 s3, 4")
    p.e(f"s_cbranch_scc1 L_loader")
    vmE = list(p.vm)

    def get_tag(q):
        q.wait_vm("E")
        q.e(f"v_readfirstlane_b32 s{TAG}, v110")
        q.e("s_nop 3")
        q.e(f"s_mul_i32 s{TAG}, s{TAG}, 0x9E3779B1")
        q.e(f"s_add_u32 s{TAG}, s{TAG}, 0x7F4A7C15")

    c = p
    srd(c, SA, P_K, 2097152)
    srd(c, SB, P_V, 2097152)
    srd(c, SC, P_SH, 4096)
    c.e("v_and_b32 v8, 7, v0")
    c.e("v_lshrrev_b32 v9, 3, v0")
    c.e(f"s_lshl_b32 s60, s{II}, 16")
    c.e(f"s_lshl_b32 s61, s{XCD}, 7")
    c.e("s_add_u32 s60, s60, s61")
    c.e("v_lshlrev_b32 v10, 11, v9")
    c.e("v_lshl_add_u32 v10, v8, 4, v10")
    c.e("v_add_u32 v10, s60, v10")
    c.e("v_add_u32 v11, 0xfffff400, v10")
    c.e("v_add_u32 v12, 0xfffff800, v10")
    c.e("v_add_u32 v13, 0xfffffc00, v10")
    c.e(f"s_lshl_b32 s61, s{XCD}, 9")
    c.e("v_lshlrev_b32 v14, 6, v8")
    c.e("v_add_u32 v14, s61, v14")
    KR, VR, SK = 16, 36, 44
    c.vmem(f"buffer_load_dwordx4 v[{KR}:{KR+3}], v11, s[{SA}:{SA+3}], 0 offen", "k")
    c.vmem(f"buffer_load_dwordx4 v[{KR+4}:{KR+7}], v12, s[{SA}:{SA+3}], 0 offen", "k")
    c.vmem(f"buffer_load_dwordx4 v[{KR+8}:{KR+11}], v13, s[{SA}:{SA+3}], 0 offen", "k")
    c.vmem(f"buffer_load_dwordx4 v[{KR+12}:{KR+15}], v10, s[{SA}:{SA+3}], 0 offen", "k")
    c.vmem(f"buffer_load_dwordx4 v[{KR+16}:{KR+19}], v10, s[{SA}:{SA+3}], 0 offen offset:1024", "k")
    c.vmem(f"buffer_load_dwordx4 v[{VR}:{VR+3}], v10, s[{SB}:{SB+3}], 0 offen", "k")
    c.vmem(f"buffer_load_dwordx4 v[{VR+4}:{VR+7}], v10, s[{SB}:{SB+3}], 0 offen offset:1024", "k")
    for j in range(4):
        c.vmem(f"buffer_load_dwordx4 v[{SK+4*j}:{SK+4*j+3}], v14, s[{SC}:{SC+3}], 0 offen offset:{16*j}", "k")
    srd(c, SD_, P_WS, 2097152, add=WS_KVR)
    srd(c, SE, P_WS, H_BYTES, add=WS_H)
    VX0, VX1, VW = 168, 169, 170
    c.e("v_and_b32 v5, 7, v3")
    c.e("v_xor_b32 v5, v5, v4")
    c.e("v_lshlrev_b32 v5, 4, v5")
    c.e("s_lshl_b32 s60, s3, 5")
    c.e("v_add_u32 v6, s60, v3")
    c.e(f"v_lshl_add_u32 v{VX0}, v6, 7, v5")
    c.e(f"v_add_u32 v{VX0}, {SLOT0}, v{VX0}")
    c.e(f"v_xor_b32 v{VX1}, 64, v{VX0}")
    w1_lane_offset(c, VW, 6)
    c.e(f"v_add_u32 v{VW}, {SLOT0+16384}, v{VW}")
    VA0, VA1, VB_, MA0, MA1, VM = 160, 161, 162, 163, 164, 165
    CH, ROLE = 71, 72
    c.e(f"s_lshr_b32 s{CH}, s3, 1")
    c.e(f"s_and_b32 s{ROLE}, s3, 1")
    c.e("v_lshrrev_b32 v5, 2, v3")
    c.e("v_lshlrev_b32 v5, 2, v5")
    c.e("v_lshl_add_u32 v5, v4, 3, v5")
    c.e("v_and_b32 v6, 3, v3")
    c.e("v_sub_u32 v6, 3, v6")
    c.e("v_lshlrev_b32 v6, 6, v6")
    c.e(f"s_lshl_b32 s60, s{CH}, 14")
    c.e(f"s_add_u32 s60, s60, {H0}")
    for m, (va, ma) in enumerate(((VA0, MA0), (VA1, MA1))):
        c.e(f"v_add_u32 v7, {-12+4*m}, v5")
        c.e(f"v_cmp_gt_i32 vcc, 0, v7")
        c.e(f"v_lshl_add_u32 v{va}, v7, 1, v6")
        c.e(f"v_add_u32 v{va}, s60, v{va}")
        c.e(f"s_nop 0")
        c.e(f"v_cndmask_b32 v15, 0, -1, vcc")
        c.e(f"v_and_b32 v1, 192, v15")
        c.e(f"v_sub_u32 v{va}, v{va}, v1")
        c.e(f"v_not_b32 v{ma}, v15")
    cm = L("cm0")
    c.e(f"s_cmp_eq_u32 s{ROLE}, 0")
    c.e(f"s_cbranch_scc1 {cm}")
    c.e(f"v_mov_b32 v{MA0}, -1"); c.e(f"v_mov_b32 v{MA1}, -1")
    c.e(f"v_add_u32 v{VA0}, 1024, v{VA0}"); c.e(f"v_add_u32 v{VA1}, 1024, v{VA1}")
    c.label(cm)
    c.e("v_lshlrev_b32 v5, 4, v4")
    c.e("v_lshlrev_b32 v6, 5, v3")
    c.e(f"v_sub_u32 v{VM}, v5, v6")
    c.e(f"s_lshl_b32 s60, s{ROLE}, 8")
    c.e(f"v_add_u32 v{VM}, s60, v{VM}")
    c.e(f"s_lshl_b32 s60, s{CH}, 12")
    c.e(f"s_add_u32 s60, s60, {KV0+480}")
    c.e(f"v_add_u32 v{VB_}, s60, v{VM}")
    ACC = 104
    get_tag(c)
    for j in range(56): c.e(f"v_mov_b32 v{ACC+j}, 0")
    c.wait_vm("k")
    T, W, VV, A, B, R = 64, 74, 82, 86, 88, 96
    for q in range(4):
        for j in range(5):
            c.e(f"v_lshlrev_b32 v{T+2*j}, 16, v{KR+4*j+q}")
            c.e(f"v_and_b32 v{T+2*j+1}, 0xffff0000, v{KR+4*j+q}")
        c.e(f"v_lshlrev_b32 v{W+0}, 16, v{SK+4*q}")
        c.e(f"v_lshlrev_b32 v{W+1}, 16, v{SK+4*q+2}")
        c.e(f"v_and_b32 v{W+2}, 0xffff0000, v{SK+4*q}")
        c.e(f"v_and_b32 v{W+3}, 0xffff0000, v{SK+4*q+2}")
        c.e(f"v_lshlrev_b32 v{W+4}, 16, v{SK+4*q+1}")
        c.e(f"v_lshlrev_b32 v{W+5}, 16, v{SK+4*q+3}")
        c.e(f"v_and_b32 v{W+6}, 0xffff0000, v{SK+4*q+1}")
        c.e(f"v_and_b32 v{W+7}, 0xffff0000, v{SK+4*q+3}")
        for j in range(2):
            c.e(f"v_lshlrev_b32 v{VV+2*j}, 16, v{VR+4*j+q}")
            c.e(f"v_and_b32 v{VV+2*j+1}, 0xffff0000, v{VR+4*j+q}")
        def pr(b): return f"v[{b}:{b+1}]"
        c.e(f"v_pk_mul_f32 {pr(A)}, {pr(T+6)}, {pr(W)}")
        c.e(f"v_pk_mul_f32 {pr(B)}, {pr(T+8)}, {pr(W)}")
        c.e(f"v_pk_fma_f32 {pr(A)}, {pr(T+4)}, {pr(W+2)}, {pr(A)}")
        c.e(f"v_pk_fma_f32 {pr(B)}, {pr(T+6)}, {pr(W+2)}, {pr(B)}")
        c.e(f"v_pk_fma_f32 {pr(A)}, {pr(T+2)}, {pr(W+4)}, {pr(A)}")
        c.e(f"v_pk_fma_f32 {pr(B)}, {pr(T+4)}, {pr(W+4)}, {pr(B)}")
        c.e(f"v_pk_fma_f32 {pr(A)}, {pr(T+0)}, {pr(W+6)}, {pr(A)}")
        c.e(f"v_pk_fma_f32 {pr(B)}, {pr(T+2)}, {pr(W+6)}, {pr(B)}")
        c.e(f"v_pk_mul_f32 {pr(A)}, {pr(A)}, {pr(VV)}")
        c.e(f"v_pk_mul_f32 {pr(B)}, {pr(B)}, {pr(VV+2)}")
        c.e(f"v_cvt_pk_bf16_f32 v{R+2*q}, v{B}, v{A}")
        c.e(f"v_cvt_pk_bf16_f32 v{R+2*q+1}, v{B+1}, v{A+1}")
    c.e("v_sub_u32 v10, 31, v9")
    c.e("v_lshlrev_b32 v11, 2, v8")
    c.e("v_xor_b32 v10, v10, v11")
    c.e("v_lshlrev_b32 v10, 2, v10")
    c.e("v_lshl_add_u32 v10, v8, 10, v10")
    for i in range(8):
        c.e(f"ds_write_b32 v10, v{R+i} offset:{128*i}")
    c.e("v_lshrrev_b32 v11, 3, v9")
    c.e("v_xor_b32 v11, v11, v8")
    c.e("v_lshlrev_b32 v11, 4, v11")
    c.e("v_lshl_add_u32 v11, v9, 7, v11")
    c.e("v_xor_b32 v12, 64, v11")
    c.e("v_lshlrev_b32 v13, 12, v9")
    c.e("v_lshl_add_u32 v13, v8, 4, v13")
    c.e(f"s_lshl_b32 s60, s{XCD}, 18")
    c.e(f"s_lshl_b32 s61, s{II}, 7")
    c.e("s_sub_u32 s61, 3968, s61")
    c.e("s_add_u32 s60, s60, s61")
    c.e("s_add_u32 s61, s60, 131072")
    F = [32, 68]
    def reads(hs):
        f = F[hs]; Lr = []
        vx = VX0 if hs == 0 else VX1
        for tb in range(2):
            Lr.append(f"ds_read_b128 v[{f+28+4*tb}:{f+28+4*tb+3}], v{vx} offset:{2048*tb}")
        for i in range(7):
            for m in range(2):
                Lr.append(f"ds_read_b64_tr_b16 v[{f+4*i+2*m}:{f+4*i+2*m+1}], v{VW} offset:{7168*hs+1792*m+32*i}")
        return Lr
    def mfmas(hs):
        f = F[hs]; Lm = []
        for i in range(7):
            for tb in range(2):
                a = ACC + (2*i+tb)*4
                Lm.append(f"v_mfma_f32_16x16x32_bf16 v[{a}:{a+3}], v[{f+4*i}:{f+4*i+3}], v[{f+28+4*tb}:{f+28+4*tb+3}], v[{a}:{a+3}]")
        return Lm
    def interleave(M, R_, per=2, extra=()):
        R_ = list(R_); X = list(extra)
        for k, m in enumerate(M):
            c.e(m)
            for _ in range(per):
                if R_: c.e(R_.pop(0))
            if not R_ and X and k >= 9:
                for _ in range(2):
                    if X: c.e(X.pop(0))
        assert not R_ and not X
    c.e("s_waitcnt lgkmcnt(0)")
    if PROF == 2: S_.stamp(c, 2)
    c.e("s_barrier")
    S_.stamp(c, 3)
    if PROF == 3: S_.stamp(c, 5, cyc=True)
    c.e("ds_read_b128 v[16:19], v11")
    c.e("ds_read_b128 v[20:23], v12 offset:4096")
    for r in reads(0): c.e(r)
    c.e("s_waitcnt lgkmcnt(0)")
    c.vmem(f"buffer_store_dwordx4 v[16:19], v13, s[{SD_}:{SD_+3}], s60 offen sc1", "kvst")
    c.vmem(f"buffer_store_dwordx4 v[20:23], v13, s[{SD_}:{SD_+3}], s61 offen sc1", "kvst")
    c.e("s_mov_b32 s60, 0")
    c.e(f"s_mov_b32 s62, {(-3*SLOTSZ) & 0xffffffff}")
    c.e(f"s_mov_b32 s63, {SLOTSZ}")
    c.label("L_g1loop")
    c.e("s_and_b32 s61, s60, 3")
    c.e("s_cmp_eq_u32 s61, 3")
    c.e(f"s_cselect_b32 s61, s62, s63")
    adv = [f"v_add_u32 v{r}, s61, v{r}" for r in [VX0, VX1, VW]]
    interleave(mfmas(0), reads(1), extra=adv)
    sk = L("nodrain")
    c.e("s_cmp_eq_u32 s60, 1")
    c.e(f"s_cbranch_scc0 {sk}")
    c.e("s_waitcnt vmcnt(0)")
    c.label(sk)
    c.e("s_waitcnt lgkmcnt(0)")
    c.e("s_barrier")
    interleave(mfmas(1), reads(0))
    c.e("s_add_u32 s60, s60, 1")
    c.e("s_cmp_lt_u32 s60, 8")
    c.e("s_waitcnt lgkmcnt(0)")
    c.e(f"s_cbranch_scc1 L_g1loop")
    c.vm = []
    S_.stamp(c, 4)
    if PROF == 3: S_.stamp(c, 6, cyc=True)
    CS, ST = 32, 8
    c.e("v_lshlrev_b32 v5, 4, v4")
    for i in range(7):
        c.e(f"ds_read_b128 v[{CS+4*i}:{CS+4*i+3}], v5 offset:{CSB+64*i}")
    c.e("s_lshl_b32 s60, s3, 5")
    c.e("v_add_u32 v6, s60, v3")
    c.e("v_lshlrev_b32 v6, 3, v6")
    c.e(f"ds_read_b64 v[{ST}:{ST+1}], v6 offset:{STB}")
    c.e(f"ds_read_b64 v[{ST+2}:{ST+3}], v6 offset:{STB+128}")
    c.e("v_and_b32 v5, 1, v4")
    c.e("v_mul_u32_u24 v5, 57344, v5")
    c.e("v_lshrrev_b32 v6, 1, v4")
    c.e("v_lshl_add_u32 v5, v6, 8, v5")
    c.e("v_lshl_add_u32 v5, v3, 4, v5")
    c.e(f"s_lshl_b32 s60, s{RB}, 3")
    c.e("s_lshl_b32 s61, s3, 1")
    c.e("s_add_u32 s60, s60, s61")
    c.e("s_mul_i32 s60, s60, 57344")
    c.e(f"s_mul_i32 s61, s{FT}, 3584")
    c.e("s_add_u32 s60, s60, s61")
    c.e("s_waitcnt lgkmcnt(0)")
    C1 = 60
    for tb in range(2): c.e(f"v_rcp_f32 v{C1+2*tb}, v{ST+2*tb+1}")
    c.e("s_nop 0")
    for tb in range(2): c.e(f"v_mul_f32 v{C1+2*tb}, 0xbfb8aa3b, v{C1+2*tb}")
    T, Z, P = 64, 72, 80
    for i in range(7):
        chains = [(tb, h) for tb in range(2) for h in range(2)]
        def tz(k): return T + 2*k, Z + 2*k
        for k, (tb, h) in enumerate(chains):
            t, z = tz(k); a = ACC + (2*i+tb)*4 + 2*h
            c.e(f"v_pk_fma_f32 v[{t}:{t+1}], v[{CS+4*i+2*h}:{CS+4*i+2*h+1}], v[{ST+2*tb}:{ST+2*tb+1}], v[{a}:{a+1}] op_sel_hi:[1,0,1] neg_lo:[0,1,0] neg_hi:[0,1,0]")
        for k, (tb, h) in enumerate(chains):
            t, z = tz(k)
            c.e(f"v_pk_mul_f32 v[{z}:{z+1}], v[{t}:{t+1}], v[{C1+2*tb}:{C1+2*tb+1}] op_sel_hi:[1,0]")
        for k in range(4):
            t, z = tz(k)
            c.e(f"v_exp_f32 v{z}, v{z}"); c.e(f"v_exp_f32 v{z+1}, v{z+1}")
        for k, (tb, h) in enumerate(chains):
            t, z = tz(k)
            c.e(f"v_pk_fma_f32 v[{z}:{z+1}], v[{z}:{z+1}], v[{ST+2*tb}:{ST+2*tb+1}], v[{ST+2*tb}:{ST+2*tb+1}] op_sel:[0,1,1] op_sel_hi:[1,1,1]")
        for k in range(4):
            t, z = tz(k)
            c.e(f"v_rcp_f32 v{z}, v{z}"); c.e(f"v_rcp_f32 v{z+1}, v{z+1}")
        for k in range(4):
            t, z = tz(k)
            c.e(f"v_pk_mul_f32 v[{t}:{t+1}], v[{t}:{t+1}], v[{z}:{z+1}]")
        q = P + 4*(i % 2)
        for k, (tb, h) in enumerate(chains):
            t, z = tz(k)
            c.e(f"v_cvt_pk_bf16_f32 v{q+2*tb+h}, v{t}, v{t+1}")
        c.e(f"s_add_u32 s61, s60, {512*i}")
        c.e("s_nop 0")
        c.e(f"v_permlane16_swap_b32 v{q}, v{q+2}")
        c.e(f"v_permlane16_swap_b32 v{q+1}, v{q+3}")
        c.vmem(f"buffer_store_dwordx4 v[{q}:{q+3}], v5, s[{SE}:{SE+3}], s61 offen sc1", "h")
    if PROF != 3: S_.stamp(c, 5)
    Y = 128
    for j in range(32): c.e(f"v_mov_b32 v{Y+j}, 0")
    srd(c, SA, P_WS, 2097152, add=WS_YT)
    srd(c, SB, P_Q, 2097152)
    srd(c, SC, P_OUT, 2097152)
    c.e("s_lshl_b32 s60, s2, 2")
    c.e(f"s_load_dword s79, s[{P_SD}:{P_SD+1}], s60")
    c.e(f"s_lshl_b32 s60, s{RB}, 4")
    c.e(f"s_add_u32 s60, s60, s{FT}")
    c.e("s_lshl_b32 s60, s60, 2")
    c.e("s_add_u32 s60, s60, s3")
    c.e("s_lshl_b32 s60, s60, 7")
    c.e(f"s_add_u32 s74, s60, {WS_HF}")
    c.e("s_waitcnt lgkmcnt(0)")
    c.e("s_barrier")

    FA = [16, 176]
    def fr(st, i):
        if st == 0: return 16 + i
        return 80 + i if i < 48 else 166 + (i - 48)
    def creads(st):
        Lr = []
        for e in range(8):
            b = fr(st, 32+4*e); a = fr(st, 4*e)
            Lr.append(f"ds_read_b128 v[{b}:{b+3}], v{VB_} offset:{(7-e)*512}")
            Lr.append(f"ds_read_b64 v[{a}:{a+1}], v{VA0} offset:{2048*e}")
            Lr.append(f"ds_read_b64 v[{a+2}:{a+3}], v{VA1} offset:{2048*e}")
        return Lr
    def cfix(st):
        a = fr(st, 0); b = fr(st, 32)
        Lr = [f"v_and_b32 v{a}, v{MA0}, v{a}", f"v_and_b32 v{a+1}, v{MA0}, v{a+1}", f"v_and_b32 v{a+2}, v{MA1}, v{a+2}", f"v_and_b32 v{a+3}, v{MA1}, v{a+3}",
             f"v_cmp_gt_i32 vcc, 32, v{VM}", f"v_mov_b32 v{MA0}, -1", f"v_mov_b32 v{MA1}, -1"]
        Lr += [f"v_cndmask_b32 v{b+j}, 0, v{b+j}, vcc" for j in range(4)]
        Lr += [f"v_add_u32 v{VM}, 64, v{VM}", "s_nop 0"]
        return Lr
    def cmfmas(st):
        Lm = []
        for gam in range(8):
            for e in range(8-gam):
                cc = gam + e; a = fr(st, 4*e); b = fr(st, 32+4*gam)
                Lm.append(f"v_mfma_f32_16x16x32_bf16 v[{Y+4*cc}:{Y+4*cc+3}], v[{a}:{a+3}], v[{b}:{b+3}], v[{Y+4*cc}:{Y+4*cc+3}]")
        return Lm
    advc = [f"v_add_u32 v{VA0}, 256, v{VA0}", f"v_add_u32 v{VA1}, 256, v{VA1}", f"v_add_u32 v{VB_}, 64, v{VB_}"]
    for r in creads(0): c.e(r)
    for a in advc: c.e(a)
    c.e("s_mov_b32 s60, 0")
    c.label("L_cloop")
    for st in range(2):
        c.e("s_waitcnt lgkmcnt(0)")
        for x in cfix(st): c.e(x)
        M = cmfmas(st); R_ = creads(1-st)
        for k, m in enumerate(M):
            c.e(m)
            if R_: c.e(R_.pop(0))
        for a in advc: c.e(a)
        if st == 0:
            nf = L("nohf")
            c.e("s_cmp_eq_u32 s60, 0")
            c.e(f"s_cbranch_scc0 {nf}")
            c.e("s_waitcnt vmcnt(0)")
            flag_store(c, 6, 7, "s74", track=False)
            if PROF != 3: S_.stamp(c, 6)
            c.label(nf)
    c.e("s_add_u32 s60, s60, 1")
    c.e("s_cmp_lt_u32 s60, 2")
    c.e(f"s_cbranch_scc1 L_cloop")
    if PROF == 1: S_.stamp(c, 1)
    ns = L("nosw")
    c.e("s_waitcnt lgkmcnt(0)")
    c.e("s_nop 4")
    c.e(f"s_cmp_eq_u32 s{ROLE}, 0")
    c.e(f"s_cbranch_scc1 {ns}")
    for j in range(16): c.e(f"v_swap_b32 v{Y+j}, v{Y+16+j}")
    c.label(ns)
    c.e("v_lshlrev_b32 v5, 4, v2")
    c.e(f"v_add_u32 v5, {RED}, v5")
    c.e("s_lshl_b32 s60, s3, 12")
    c.e("v_add_u32 v6, s60, v5")
    c.e("s_xor_b32 s60, s3, 1")
    c.e("s_lshl_b32 s60, s60, 12")
    c.e("v_add_u32 v7, s60, v5")
    c.e("v_lshlrev_b32 v8, 5, v3")
    c.e("v_lshl_add_u32 v8, v4, 3, v8")
    c.e(f"s_lshl_b32 s60, s{CH}, 12")
    c.e(f"s_lshl_b32 s61, s{ROLE}, 11")
    c.e("s_sub_u32 s60, s60, s61")
    c.e(f"s_add_u32 s60, s60, {KV0 + 4088 - 1536}")
    c.e("v_sub_u32 v9, s60, v8")
    KVV, PR, U = 16, 32, 48
    for i in range(4):
        c.e(f"ds_read_b64 v[{KVV+2*i}:{KVV+2*i+1}], v9 offset:{(3-i)*512}")
    for i in range(4):
        c.e(f"ds_write_b128 v6, v[{Y+16+4*i}:{Y+16+4*i+3}] offset:{1024*i}")
    c.e(f"s_cmp_eq_u32 s{CH}, 0")
    c.e("s_cselect_b32 s60, 16, 0")
    c.e("s_lshl_b32 s79, s79, s60")
    c.e("s_and_b32 s79, s79, 0xffff0000")
    c.e("s_lshl_b32 s60, s2, 1")
    c.e(f"s_add_u32 s60, s60, s{CH}")
    c.e("s_lshl_b32 s60, s60, 12")
    c.e(f"s_lshl_b32 s61, s{ROLE}, 11")
    c.e("s_add_u32 s60, s60, s61")
    c.e("s_lshl_b32 s61, s3, 2")
    c.e("v_mov_b32 v10, s61")
    c.e("v_xor_b32 v11, 4, v10")
    c.e("v_mov_b32 v12, 1")
    c.e("s_waitcnt lgkmcnt(0)")
    c.e(f"ds_write_b32 v10, v12 offset:{LSF}")
    sp, sd = L("lsp"), L("lsd")
    c.e(f"s_mov_b32 s{SPIN}, {SPIN_MAX}")
    c.label(sp)
    c.e(f"ds_read_b32 v12, v11 offset:{LSF}")
    c.e("s_waitcnt lgkmcnt(0)")
    c.e("v_readfirstlane_b32 s61, v12")
    c.e("s_nop 3")
    c.e("s_cmp_eq_u32 s61, 1")
    c.e(f"s_cbranch_scc1 {sd}")
    c.e(f"s_sub_u32 s{SPIN}, s{SPIN}, 1")
    c.e(f"s_cbranch_scc0 {sp}")
    c.label(sd)
    for i in range(4):
        c.e(f"ds_read_b128 v[{PR+4*i}:{PR+4*i+3}], v7 offset:{1024*i}")
    for i in range(4):
        y = Y + 4*i
        k0, k1 = KVV+2*i, KVV+2*i+1
        c.e(f"v_and_b32 v{U}, 0xffff0000, v{k1}")
        c.e(f"v_lshlrev_b32 v{U+1}, 16, v{k1}")
        c.e(f"v_and_b32 v{U+2}, 0xffff0000, v{k0}")
        c.e(f"v_lshlrev_b32 v{U+3}, 16, v{k0}")
        for r in range(4):
            c.e(f"v_fmac_f32 v{y+r}, s79, v{U+r}")
    c.e("s_waitcnt lgkmcnt(0)")
    for i in range(4):
        y = Y + 4*i
        for r in range(4): c.e(f"v_add_f32 v{y+r}, v{y+r}, v{PR+4*i+r}")
        c.e(f"v_cvt_pk_bf16_f32 v{U+4+2*i}, v{y}, v{y+1}")
        c.e(f"v_cvt_pk_bf16_f32 v{U+5+2*i}, v{y+2}, v{y+3}")
        c.e(f"buffer_store_dwordx2 v[{U+4+2*i}:{U+5+2*i}], v8, s[{SA}:{SA+3}], s60 offen offset:{512*i} sc1")
    if PROF == 1: S_.stamp(c, 2)

    c.e("s_and_b32 s64, s3, 1")
    c.e("s_lshr_b32 s65, s3, 1")
    c.e(f"s_lshl_b32 s60, s{TT}, 6")
    c.e("s_lshl_b32 s61, s65, 5")
    c.e("s_add_u32 s60, s60, s61")
    c.e("v_add_u32 v5, s60, v3")
    VST = 26
    c.e(f"v_lshlrev_b32 v{VST}, 3, v5")
    ST2, XV = 8, 12
    c.e("s_nop 0")
    c.e(f"buffer_load_dwordx2 v[{ST2+2}:{ST2+3}], v{VST}, s[{FL}:{FL+3}], 0 offen offset:128 sc1")
    c.e(f"s_lshl_b32 s60, s{DT}, 7")
    c.e("s_lshl_b32 s61, s64, 6")
    c.e("s_add_u32 s60, s60, s61")
    c.e("v_lshlrev_b32 v6, 10, v5")
    c.e("v_add_u32 v6, s60, v6")
    c.e("v_lshl_add_u32 v7, v4, 3, v6")
    c.e("s_mov_b32 s61, 16384")
    for tb in range(2):
        for db in range(2):
            so = "0" if tb == 0 else "s61"
            c.e(f"buffer_load_dwordx2 v[{XV+4*tb+2*db}:{XV+4*tb+2*db+1}], v7, s[{SB}:{SB+3}], {so} offen offset:{32*db}")
    c.e(f"buffer_load_dwordx2 v[{ST2}:{ST2+1}], v{VST}, s[{FL}:{FL+3}], 0 offen sc1")
    VO = 20
    c.e("v_and_b32 v7, 1, v4")
    c.e(f"v_lshl_add_u32 v{VO}, v7, 5, v6")
    c.e("v_lshrrev_b32 v7, 1, v4")
    c.e(f"v_lshl_add_u32 v{VO}, v7, 4, v{VO}")
    VB, VA = 21, 22
    c.e("s_lshl_b32 s60, s65, 12")
    c.e("v_lshlrev_b32 v7, 4, v2")
    c.e(f"v_add_u32 v{VB}, s60, v7")
    c.e(f"v_add_u32 v{VB}, {HSA}, v{VB}")
    c.e("v_lshrrev_b32 v5, 2, v3")
    c.e("v_lshl_add_u32 v6, v4, 3, v5")
    c.e("v_lshlrev_b32 v6, 7, v6")
    c.e("v_lshrrev_b32 v5, 1, v5")
    c.e("v_and_b32 v7, 1, v4")
    c.e("v_lshl_or_b32 v5, v7, 1, v5")
    c.e("v_lshlrev_b32 v5, 1, v5")
    c.e("v_and_b32 v7, 3, v3")
    c.e("v_and_b32 v24, 1, v7")
    c.e("v_lshl_add_u32 v6, v24, 3, v6")
    c.e(f"v_add_u32 v6, {WS0}, v6")
    c.e("v_lshrrev_b32 v7, 1, v7")
    for db in range(2):
        c.e("s_lshl_b32 s60, s64, 2")
        c.e(f"s_add_u32 s60, s60, {2*db}")
        c.e("v_add_u32 v24, s60, v7")
        c.e("v_xor_b32 v24, v24, v5")
        c.e(f"v_lshl_add_u32 v{VA+db}, v24, 4, v6")
    F2 = [32, 96]
    AC2 = 64
    for j in range(16): c.e(f"v_mov_b32 v{AC2+j}, 0")
    VB2 = 25
    c.e(f"v_subrev_u32 v{VB2}, {HSA}, v{VB}")
    def reads2(st, slot, ks):
        f = F2[st]; Lr = []
        vb, hb = (VB, slot*8192) if slot < NH1 else (VB2, (slot-NH1)*8192)
        for db in range(2):
            for m in range(2):
                Lr.append(f"ds_read_b64_tr_b16 v[{f+8*ks+4*db+2*m}:{f+8*ks+4*db+2*m+1}], v{VA+db} offset:{slot*8192+4096*ks+512*m}")
        for tb in range(2):
            Lr.append(f"ds_read_b128 v[{f+16+8*ks+4*tb}:{f+16+8*ks+4*tb+3}], v{vb} offset:{hb+2048*tb+1024*ks}")
        return Lr
    def mfmas2(st, ks):
        f = F2[st]; Lm = []
        for db in range(2):
            for tb in range(2):
                a = AC2 + (2*db+tb)*4
                Lm.append(f"v_mfma_f32_16x16x32_bf16 v[{a}:{a+3}], v[{f+8*ks+4*db}:{f+8*ks+4*db+3}], v[{f+16+8*ks+4*tb}:{f+16+8*ks+4*tb+3}], v[{a}:{a+3}]")
        return Lm
    c.e("s_mov_b32 s60, 0")
    c.e("s_barrier")
    S_.stamp(c, 7)
    for ks in range(2):
        for r in reads2(0, 0, ks): c.e(r)
    c.label("L_g2loop")
    for u in range(8):
        st = u % 2
        for ks in range(2):
            c.e("s_waitcnt lgkmcnt(6)")
            M = mfmas2(st, ks); R_ = reads2(1-st, (u+1) % 8, ks)
            for k, m in enumerate(M):
                c.e(m)
                for _ in range(2):
                    if R_: c.e(R_.pop(0))
            assert not R_
        if u == 2:
            yd = L("ydrain")
            c.e("s_cmp_eq_u32 s60, 0")
            c.e(f"s_cbranch_scc0 {yd}")
            c.e("s_waitcnt vmcnt(0)")
            c.label(yd)
        c.e("s_barrier")
        if u == 3:
            c.e("s_cmp_eq_u32 s60, 3")
            c.e("s_cbranch_scc1 L_g2done")
    c.e("s_add_u32 s60, s60, 1")
    c.e("s_branch L_g2loop")
    c.label("L_g2done")
    c.e("s_waitcnt lgkmcnt(0)")
    S_.stamp(c, 8)
    c.e("v_lshrrev_b32 v5, 2, v3")
    c.e("v_lshl_add_u32 v5, v4, 2, v5")
    c.e("s_lshl_b32 s60, s64, 5")
    c.e("v_add_u32 v5, s60, v5")
    c.e("v_lshlrev_b32 v5, 7, v5")
    c.e("v_and_b32 v6, 3, v3")
    c.e("v_lshl_add_u32 v5, v6, 3, v5")
    c.e("s_lshl_b32 s60, s65, 6")
    c.e(f"s_add_u32 s60, s60, {YB}")
    c.e("v_add_u32 v5, s60, v5")
    YV = 128
    for tb in range(2):
        for db in range(2):
            c.e(f"ds_read_b64_tr_b16 v[{YV+4*tb+2*db}:{YV+4*tb+2*db+1}], v5 offset:{2048*db+32*tb}")
    lp, done = L("stp"), L("std")
    c.e(f"s_mov_b32 s{SPIN}, {SPIN_MAX}")
    c.label(lp)
    c.e(f"v_cmp_ne_u32 vcc, s{TAG}, v{ST2+1}")
    c.e(f"v_cmp_ne_u32 s[60:61], s{TAG}, v{ST2+3}")
    c.e("s_nop 1")
    c.e("s_or_b64 vcc, vcc, s[60:61]")
    c.e(f"s_cbranch_vccz {done}")
    c.e(f"s_sub_u32 s{SPIN}, s{SPIN}, 1")
    c.e(f"s_cbranch_scc1 {done}")
    c.e(f"buffer_load_dwordx2 v[{ST2}:{ST2+1}], v{VST}, s[{FL}:{FL+3}], 0 offen sc1")
    c.e(f"buffer_load_dwordx2 v[{ST2+2}:{ST2+3}], v{VST}, s[{FL}:{FL+3}], 0 offen offset:128 sc1")
    c.e("s_waitcnt vmcnt(0)")
    c.e(f"s_branch {lp}")
    c.label(done)
    RS = 40
    for tb in range(2):
        c.e(f"v_and_b32 v{ST2+2*tb+1}, 0xffff0000, v{ST2+2*tb}")
        c.e(f"v_lshlrev_b32 v{ST2+2*tb}, 16, v{ST2+2*tb}")
    for tb in range(2):
        c.e(f"v_rcp_f32 v{RS+2*tb}, v{ST2+2*tb+1}")
    c.e("s_waitcnt lgkmcnt(0)")
    XU, YU, P = 44, 48, 52
    c.e("s_mov_b32 s61, 16384")
    for tb in range(2):
        q = P + 4*tb
        for db in range(2):
            a = AC2 + (2*db+tb)*4
            x0 = XV+4*tb+2*db; y0 = YV+4*tb+2*db
            c.e(f"v_lshlrev_b32 v{XU}, 16, v{x0}"); c.e(f"v_and_b32 v{XU+1}, 0xffff0000, v{x0}")
            c.e(f"v_lshlrev_b32 v{XU+2}, 16, v{x0+1}"); c.e(f"v_and_b32 v{XU+3}, 0xffff0000, v{x0+1}")
            c.e(f"v_lshlrev_b32 v{YU}, 16, v{y0}"); c.e(f"v_and_b32 v{YU+1}, 0xffff0000, v{y0}")
            c.e(f"v_lshlrev_b32 v{YU+2}, 16, v{y0+1}"); c.e(f"v_and_b32 v{YU+3}, 0xffff0000, v{y0+1}")
            for h in range(2):
                xu, yu, aa = XU+2*h, YU+2*h, a+2*h
                c.e(f"v_pk_add_f32 v[{aa}:{aa+1}], v[{aa}:{aa+1}], v[{xu}:{xu+1}]")
                c.e(f"v_pk_add_f32 v[{xu}:{xu+1}], v[{xu}:{xu+1}], v[{ST2+2*tb}:{ST2+2*tb+1}] op_sel_hi:[1,0] neg_lo:[0,1] neg_hi:[0,1]")
                c.e(f"v_pk_mul_f32 v[{yu}:{yu+1}], v[{yu}:{yu+1}], v[{RS+2*tb}:{RS+2*tb+1}] op_sel_hi:[1,0]")
                c.e(f"v_pk_fma_f32 v[{aa}:{aa+1}], v[{xu}:{xu+1}], v[{yu}:{yu+1}], v[{aa}:{aa+1}]")
                c.e(f"v_cvt_pk_bf16_f32 v{q+2*db+h}, v{aa}, v{aa+1}")
        c.e("s_nop 1")
        c.e(f"v_permlane16_swap_b32 v{q}, v{q+2}")
        c.e(f"v_permlane16_swap_b32 v{q+1}, v{q+3}")
        so = "0" if tb == 0 else "s61"
        c.e(f"buffer_store_dwordx4 v[{q}:{q+3}], v{VO}, s[{SC}:{SC+3}], {so} offen")
    S_.stamp(c, 9)
    if DIAG:
        ns_ = L("nospin"); sp_ = L("spin")
        c.e("s_cmp_lg_u32 s2, 0"); c.e(f"s_cbranch_scc1 {ns_}")
        c.e("s_cmp_lg_u32 s3, 0"); c.e(f"s_cbranch_scc1 {ns_}")
        c.e("s_waitcnt vmcnt(0) lgkmcnt(0)")
        if DIAG == "fixed":
            c.e("s_add_u32 s80, s82, 6000")
        else:
            k = int(DIAG)
            c.e(f"s_sub_u32 s80, s{82+2*k}, s82")
            c.e("s_lshl_b32 s80, s80, 3")
            c.e("s_add_u32 s80, s80, s100")
        c.label(sp_)
        c.e("s_memrealtime s[98:99]")
        c.e("s_waitcnt lgkmcnt(0)")
        c.e("s_sub_u32 s81, s98, s80")
        c.e("s_cmp_lt_i32 s81, 0")
        c.e(f"s_cbranch_scc1 {sp_}")
        c.label(ns_)
    elif PROF:
        c.e("s_waitcnt vmcnt(0)")
        S_.flush(c, 10, P_WS, 3)
    c.e("s_endpgm")

    l = p
    def SL(i):
        if PROF == 1: S_.stamp(l, i)
    l.vm = list(vmE)
    l.label("L_loader")
    if LPRIO: l.e(f"s_setprio {LPRIO}")
    CW, CH, HF_ = 60, 61, 62
    l.e(f"s_sub_u32 s{CW}, s3, 4")
    l.e(f"s_lshr_b32 s{CH}, s{CW}, 1")
    l.e(f"s_and_b32 s{HF_}, s{CW}, 1")
    srd(l, SA, P_Q, 2097152)
    l.e("v_lshlrev_b32 v9, 4, v2")
    l.e("s_lshl_b32 s64, s2, 13")
    l.e(f"s_lshl_b32 s65, s{CW}, 11")
    l.e("s_add_u32 s64, s64, s65")
    XR = 16
    l.vmem(f"buffer_load_dwordx4 v[{XR}:{XR+3}], v9, s[{SA}:{SA+3}], s64 offen", "xr")
    l.vmem(f"buffer_load_dwordx4 v[{XR+4}:{XR+7}], v9, s[{SA}:{SA+3}], s64 offen offset:1024", "xr")
    l.e("s_lshl_b32 s64, s2, 1")
    l.e(f"s_add_u32 s64, s64, s{CH}")
    l.e(f"s_lshl_b32 s64, s64, 12")
    l.e(f"s_add_u32 s{SB}, s{P_SK}, s64"); l.e(f"s_addc_u32 s{SB+1}, s{P_SK+1}, 0"); l.e(f"s_mov_b32 s{SB+2}, 4096"); l.e(f"s_mov_b32 s{SB+3}, 0x00020000")
    srd(l, SC, P_W1, 1835008)
    srd(l, SD_, P_WS, 2097152, add=WS_KVR)
    HQ = [24, 32]
    def h_loads(q):
        q.e(f"s_lshl_b32 s64, s{HF_}, 7")
        q.e("v_add_u32 v5, s64, v2")
        q.e("v_lshlrev_b32 v6, 4, v5")
        q.e("v_add_u32 v7, -8, v6")
        q.e("v_add_u32 v8, 1016, v6")
        q.vmem(f"buffer_load_dwordx2 v[{HQ[0]}:{HQ[0]+1}], v7, s[{SB}:{SB+3}], 0 offen", "h")
        q.vmem(f"buffer_load_dwordx4 v[{HQ[0]+2}:{HQ[0]+5}], v6, s[{SB}:{SB+3}], 0 offen", "h")
        q.vmem(f"buffer_load_dwordx2 v[{HQ[1]}:{HQ[1]+1}], v8, s[{SB}:{SB+3}], 0 offen", "h")
        q.vmem(f"buffer_load_dwordx4 v[{HQ[1]+2}:{HQ[1]+5}], v6, s[{SB}:{SB+3}], 0 offen offset:1024", "h")
    def stats(q):
        q.wait_vm("xr")
        E = 64; S = 80; Q = 88; O = 92
        for rw in range(2):
            for j in range(4):
                q.e(f"v_lshlrev_b32 v{E+8*rw+2*j}, 16, v{XR+4*rw+j}")
                q.e(f"v_and_b32 v{E+8*rw+2*j+1}, 0xffff0000, v{XR+4*rw+j}")
        for rw in range(2):
            b = E + 8*rw
            q.e(f"v_pk_add_f32 v[{S+2*rw}:{S+2*rw+1}], v[{b}:{b+1}], v[{b+2}:{b+3}]")
            q.e(f"v_pk_add_f32 v[{S+4+2*rw}:{S+4+2*rw+1}], v[{b+4}:{b+5}], v[{b+6}:{b+7}]")
        for rw in range(2):
            q.e(f"v_pk_add_f32 v[{S+2*rw}:{S+2*rw+1}], v[{S+2*rw}:{S+2*rw+1}], v[{S+4+2*rw}:{S+4+2*rw+1}]")
        for rw in range(2):
            q.e(f"v_add_f32 v{S+2*rw}, v{S+2*rw}, v{S+2*rw+1}")
        allreduce(q, [S, S+2], [S+4, S+5])
        for rw in range(2):
            q.e(f"v_mul_f32 v{S+2*rw}, 0x3b000000, v{S+2*rw}")
        for rw in range(2):
            b = E + 8*rw
            for j in range(4):
                q.e(f"v_pk_add_f32 v[{b+2*j}:{b+2*j+1}], v[{b+2*j}:{b+2*j+1}], v[{S+2*rw}:{S+2*rw+1}] op_sel_hi:[1,0] neg_lo:[0,1] neg_hi:[0,1]")
        for rw in range(2):
            b = E + 8*rw
            q.e(f"v_pk_mul_f32 v[{Q+2*rw}:{Q+2*rw+1}], v[{b}:{b+1}], v[{b}:{b+1}]")
            for j in range(1,4):
                q.e(f"v_pk_fma_f32 v[{Q+2*rw}:{Q+2*rw+1}], v[{b+2*j}:{b+2*j+1}], v[{b+2*j}:{b+2*j+1}], v[{Q+2*rw}:{Q+2*rw+1}]")
        for rw in range(2):
            q.e(f"v_add_f32 v{Q+2*rw}, v{Q+2*rw}, v{Q+2*rw+1}")
        allreduce(q, [Q, Q+2], [S+4, S+5])
        get_tag(q)
        for rw in range(2):
            q.e(f"v_mul_f32 v{Q+2*rw}, 0x3b000000, v{Q+2*rw}")
            q.e(f"v_cvt_pk_bf16_f32 v{Q+2*rw}, v{Q+2*rw}, v{Q+2*rw}")
            q.e(f"v_and_b32 v{Q+2*rw}, 0xffff0000, v{Q+2*rw}")
            q.e(f"v_add_f32 v{Q+2*rw}, 0x3727c5ac, v{Q+2*rw}")
            q.e(f"v_cvt_pk_bf16_f32 v{Q+2*rw}, v{Q+2*rw}, v{Q+2*rw}")
            q.e(f"v_and_b32 v{Q+2*rw}, 0xffff0000, v{Q+2*rw}")
            q.e(f"v_sqrt_f32 v{Q+2*rw}, v{Q+2*rw}")
            q.e("s_nop 0")
            q.e(f"v_cvt_pk_bf16_f32 v{O+2*rw}, v{S+2*rw}, v{Q+2*rw}")
            q.e(f"v_mov_b32 v{O+2*rw+1}, s{TAG}")
        q.e("s_lshl_b32 s64, s2, 6")
        q.e(f"s_lshl_b32 s65, s{CW}, 4")
        q.e("s_add_u32 s64, s64, s65")
        q.e("v_mov_b32 v10, 0")
        q.e("s_mov_b64 exec, 1")
        q.vmem(f"buffer_store_dwordx2 v[{O}:{O+1}], v10, s[{FL}:{FL+3}], s64 offen sc1", "sst")
        q.vmem(f"buffer_store_dwordx2 v[{O+2}:{O+3}], v10, s[{FL}:{FL+3}], s64 offen offset:8 sc1", "sst")
        q.e("s_mov_b64 exec, -1")
    def build_h(q):
        q.wait_vm("h")
        q.e("v_lshrrev_b32 v10, 2, v5")
        q.e("v_lshlrev_b32 v10, 8, v10")
        q.e("v_and_b32 v11, 3, v5")
        q.e("v_lshl_add_u32 v10, v11, 4, v10")
        q.e(f"s_lshl_b32 s64, s{CH}, 14")
        q.e(f"s_add_u32 s64, s64, {H0}")
        q.e("v_add_u32 v10, s64, v10")
        for grp in range(2):
            b = HQ[grp]; C = 64
            for m in range(4):
                q.e(f"v_alignbit_b32 v{C+m}, v{b+2+m}, v{b+1+m}, 16")
                q.e(f"v_alignbit_b32 v{C+4+m}, v{b+1+m}, v{b+m}, 16")
                q.e(f"v_mov_b32 v{C+8+m}, v{b+1+m}")
            o = 4096*grp
            q.e(f"ds_write_b128 v10, v[{b+2}:{b+5}] offset:{o}")
            q.e(f"ds_write_b128 v10, v[{C}:{C+3}] offset:{o+64}")
            q.e(f"ds_write_b128 v10, v[{C+8}:{C+11}] offset:{o+128}")
            q.e(f"ds_write_b128 v10, v[{C+4}:{C+7}] offset:{o+192}")
            q.e("s_nop 1")
    CA0, CA1, CF, CAC = 100, 101, 104, 112
    def colsum_setup(q):
        w1_lane_offset(q, CA0, 102)
        q.e(f"v_add_u32 v{CA0}, {SLOT0+16384}, v{CA0}")
        q.e(f"s_add_u32 s64, s{CW}, 4")
        q.e("s_min_u32 s64, s64, 6")
        q.e("s_lshl_b32 s64, s64, 5")
        q.e(f"v_add_u32 v{CA1}, s64, v{CA0}")
        q.e(f"s_lshl_b32 s64, s{CW}, 5")
        q.e(f"v_add_u32 v{CA0}, s64, v{CA0}")
        for j in range(4): q.e(f"v_mov_b32 v{CAC+j}, 0")
        q.e("s_mov_b32 s77, 0x3f803f80")
    def colsum_reads(q, s):
        k = 0
        for hs in range(2):
            for j, va in enumerate((CA0, CA1)):
                for m in range(2):
                    q.e(f"ds_read_b64_tr_b16 v[{120+2*k}:{120+2*k+1}], v{va} offset:{7168*hs+1792*m}")
                    k += 1
        d = SLOTSZ if s % 4 != 3 else -3*SLOTSZ
        q.e(f"v_add_u32 v{CA0}, {d & 0xffffffff}, v{CA0}")
        q.e(f"v_add_u32 v{CA1}, {d & 0xffffffff}, v{CA1}")
    def colsum_dots(q):
        q.e("s_waitcnt lgkmcnt(0)")
        k = 0
        for hs in range(2):
            for j in range(2):
                for m in range(2):
                    q.e(f"v_dot2c_f32_bf16 v{CAC+2*j}, s77, v{120+2*k}")
                    q.e(f"v_dot2c_f32_bf16 v{CAC+2*j+1}, s77, v{120+2*k+1}")
                    k += 1
    def colsum_finish(q):
        q.e("s_nop 2")
        for j in range(2): q.e(f"v_add_f32 v{CAC+2*j}, v{CAC+2*j}, v{CAC+2*j+1}")
        rowreduce(q, [CAC, CAC+2], [CAC+1, CAC+3])
        q.e("v_lshlrev_b32 v102, 2, v3")
        q.e(f"s_lshl_b32 s64, s{CW}, 6")
        q.e("v_add_u32 v103, s64, v102")
        q.e(f"ds_write_b32 v103, v{CAC} offset:{CSB}")
        q.e(f"s_add_u32 s64, s{CW}, 4")
        q.e("s_min_u32 s64, s64, 6")
        q.e("s_lshl_b32 s64, s64, 6")
        q.e("v_add_u32 v103, s64, v102")
        q.e(f"ds_write_b32 v103, v{CAC+2} offset:{CSB}")
    def kv_dma(q):
        q.e("s_lshl_b32 s64, s2, 1")
        q.e(f"s_add_u32 s64, s64, s{CW}")
        q.e("s_lshl_b32 s65, s64, 12")
        q.e(f"s_lshl_b32 s64, s{CW}, 12")
        q.e(f"s_add_u32 m0, s64, {KV0}")
        for j in range(4):
            if j: q.e("s_add_u32 m0, m0, 1024")
            q.e("s_add_u32 s65, s65, 1024" if j else "s_nop 0")
            q.e(f"buffer_load_dwordx4 v9, s[{SD_}:{SD_+3}], s65 offen sc1 lds")
    def kv_flag_addr(q):
        q.e("v_lshlrev_b32 v12, 10, v2")
        q.e("s_lshr_b32 s65, s2, 5")
        q.e("s_lshl_b32 s65, s65, 7")
        q.e(f"s_add_u32 s65, s65, {WS_PF}")

    def build_h_part(q, grp):
        if grp == 0:
            q.wait_vm("h")
            q.e("v_lshrrev_b32 v10, 2, v5")
            q.e("v_lshlrev_b32 v10, 8, v10")
            q.e("v_and_b32 v6, 3, v5")
            q.e("v_lshl_add_u32 v10, v6, 4, v10")
            q.e(f"s_lshl_b32 s64, s{CH}, 14")
            q.e(f"s_add_u32 s64, s64, {H0}")
            q.e("v_add_u32 v10, s64, v10")
        b = HQ[grp]; C = 64
        for m in range(4):
            q.e(f"v_alignbit_b32 v{C+m}, v{b+2+m}, v{b+1+m}, 16")
            q.e(f"v_alignbit_b32 v{C+4+m}, v{b+1+m}, v{b+m}, 16")
            q.e(f"v_mov_b32 v{C+8+m}, v{b+1+m}")
        o = 4096*grp
        q.e(f"ds_write_b128 v10, v[{b+2}:{b+5}] offset:{o}")
        q.e(f"ds_write_b128 v10, v[{C}:{C+3}] offset:{o+64}")
        q.e(f"ds_write_b128 v10, v[{C+8}:{C+11}] offset:{o+128}")
        q.e(f"ds_write_b128 v10, v[{C+4}:{C+7}] offset:{o+192}")
    def dot_list():
        D = []; k = 0
        for hs in range(2):
            for j in range(2):
                for m in range(2):
                    D.append(f"v_dot2c_f32_bf16 v{CAC+2*j}, s77, v{120+2*k}")
                    D.append(f"v_dot2c_f32_bf16 v{CAC+2*j+1}, s77, v{120+2*k+1}")
                    k += 1
        return D
    def g1_loader(q, issue, is_x):
        issue(0, None); issue(1, None)
        colsum_setup(q)
        issue(2, None)
        for s in range(8):
            if s == 7 and is_x:
                q.e("s_waitcnt vmcnt(0)")
                q.e(f"v_cmp_ne_u32 vcc, s{TAG}, v13")
                q.e("s_nop 1")
                q.e("s_mov_b32 vcc_hi, 0")
                q.e("s_cmp_eq_u64 vcc, 0")
                q.e("s_cselect_b32 s78, 1, 0")
                ok = L("stok")
                q.e(f"v_cmp_ne_u32 vcc, s{TAG}, v15")
                q.e("s_nop 1")
                q.e(f"s_cbranch_vccz {ok}")
                q.e("v_lshlrev_b32 v11, 3, v2")
                poll(q, [(11, "s73", 14, 2, True)])
                q.label(ok)
                q.vm = []
            else:
                q.wait_vm(f"s{s}")
            q.e("s_barrier")
            if PROF == 2: S_.stamp(q, 1 + s)
            if s == 7 and is_x:
                nk = L("nokv")
                q.e("s_cmp_eq_u32 s78, 1")
                q.e(f"s_cbranch_scc0 {nk}")
                kv_dma(q)
                q.label(nk)
            colsum_reads(q, s)
            if s <= 4:
                issue(s+3, dot_list())
            if s == 0: stats(q)
            if s == 1: h_loads(q)
            if s == 2 and is_x:
                sk = L("nopf")
                q.e(f"s_cmp_eq_u32 s{CW}, 0")
                q.e(f"s_cbranch_scc0 {sk}")
                q.e("s_lshl_b32 s64, s2, 7")
                q.e(f"s_add_u32 s64, s64, {WS_PF}")
                flag_store(q, 13, 12, "s64", track=False)
                q.label(sk)
            if s == 5 and is_x:
                q.e(f"s_lshl_b32 s64, s{RB}, 7")
                q.e(f"s_lshl_b32 s73, s{CW}, 6")
                q.e("s_add_u32 s64, s64, s73")
                q.e("s_lshl_b32 s73, s64, 3")
                q.e("v_lshlrev_b32 v11, 3, v2")
                q.vmem(f"buffer_load_dwordx2 v[14:15], v11, s[{FL}:{FL+3}], s73 offen sc1", "pl")
            if s == 6 and is_x:
                kv_flag_addr(q)
                q.vmem(f"buffer_load_dword v13, v12, s[{FL}:{FL+3}], s65 offen sc1", "pl")
            if s == 7 and is_x:
                q.e("v_and_b32 v15, 0xffff0000, v14")
                q.e("v_lshlrev_b32 v14, 16, v14")
                q.e(f"s_lshl_b32 s64, s{CW}, 9")
                q.e("v_lshl_add_u32 v11, v2, 3, s64")
                q.e(f"ds_write_b64 v11, v[14:15] offset:{STB}")
                q.e("v_mov_b32 v16, 0"); q.e("v_mov_b32 v17, 0")
                q.e("v_mov_b32 v11, 0")
                q.e(f"ds_write_b64 v11, v[16:17] offset:{LSF}")
                q.e(f"ds_write_b64 v11, v[16:17] offset:{LSF+8}")
            if s > 4:
                q.e("s_waitcnt lgkmcnt(0)")
                for d in dot_list(): q.e(d)
            if s == 5: build_h_part(q, 0)
            if s == 6: build_h_part(q, 1)
            if s == 7: colsum_finish(q)
            if s >= 5: q.e("s_waitcnt lgkmcnt(0)")
        q.e("s_barrier")

    l.e(f"s_cmp_ge_u32 s{CW}, 2")
    l.e(f"s_cbranch_scc1 L_wload")
    vm_save = list(l.vm)
    l.e("v_lshrrev_b32 v12, 3, v2")
    l.e("v_and_b32 v13, 7, v2")
    l.e("v_xor_b32 v13, v13, v12")
    l.e("v_lshlrev_b32 v13, 4, v13")
    l.e("v_lshl_add_u32 v48, v12, 10, v13")
    l.e(f"s_lshl_b32 s66, s{RB}, 7")
    l.e(f"s_lshl_b32 s67, s{CW}, 6")
    l.e("s_add_u32 s66, s66, s67")
    l.e("s_lshl_b32 s66, s66, 10")
    l.e(f"s_lshl_b32 s67, s{CW}, 13")
    def sprinkle(i, D):
        if D is None: return
        if i == 1: l.e("s_waitcnt lgkmcnt(0)")
        if i >= 1:
            for _ in range(3):
                if D: l.e(D.pop(0))
    def issue_x(s, D):
        l.e(f"s_add_u32 s68, s66, {128*s}")
        l.e(f"s_add_u32 m0, s67, {SLOT0 + (s%4)*SLOTSZ}")
        for i in range(8):
            if i:
                l.e("s_add_u32 m0, m0, 1024")
                l.e("s_add_u32 s68, s68, 8192")
            else:
                l.e("s_nop 0")
            l.vmem(f"buffer_load_dwordx4 v48, s[{SA}:{SA+3}], s68 offen lds", f"s{s}")
            sprinkle(i, D)
        if D:
            for d in D: l.e(d)
    g1_loader(l, issue_x, True)
    SL(1)
    VW2, STB0 = 56, 64
    def w2_setup():
        srd(l, SC, P_W2, 1835008)
        w2_voffsets(l, VW2, t=58)
        l.e(f"s_lshl_b32 s66, s{CW}, 14")
        l.e(f"s_lshl_b32 s64, s{DT}, 7")
        l.e("s_add_u32 s66, s66, s64")
        l.e(f"s_lshl_b32 s67, s{CW}, 11")
        l.e(f"s_add_u32 s67, s67, {WS0}")
        l.e("v_lshlrev_b32 v60, 4, v2")
        l.e("v_add_u32 v60, s67, v60")
    def w2_next():
        l.e("s_add_u32 s71, s71, 1")
        l.e("s_add_u32 s72, s72, 65536")
        l.e("s_cmp_eq_u32 s71, 28")
        l.e("s_cselect_b32 s72, s66, s72")
        l.e("s_cselect_b32 s71, 0, s71")
    def w2_ring():
        l.e(f"s_mov_b32 s71, s{O2}")
        l.e(f"s_lshl_b32 s72, s{O2}, 16")
        l.e("s_add_u32 s72, s72, s66")
        l.e("s_mov_b32 s73, s67")
        l.e("s_mov_b32 s70, 0")
        lab = L("w2ring")
        l.label(lab)
        l.e("s_mov_b32 m0, s73")
        l.e("s_add_u32 s64, s72, 8192")
        l.e(f"buffer_load_dwordx4 v{VW2}, s[{SC}:{SC+3}], s72 offen lds")
        l.e("s_add_u32 m0, m0, 1024")
        l.e("s_add_u32 s73, s73, 8192")
        l.e(f"buffer_load_dwordx4 v{VW2+1}, s[{SC}:{SC+3}], s64 offen lds")
        w2_next()
        l.e("s_add_u32 s70, s70, 1")
        l.e(f"s_cmp_lt_u32 s70, {NWS}")
        l.e(f"s_cbranch_scc1 {lab}")
    def w2_stash():
        for st in range(NWS, 28):
            r = STB0 + 8*(st-NWS)
            l.e("s_add_u32 s64, s72, 8192")
            l.e(f"buffer_load_dwordx4 v[{r}:{r+3}], v{VW2}, s[{SC}:{SC+3}], s72 offen")
            l.e(f"buffer_load_dwordx4 v[{r+4}:{r+7}], v{VW2+1}, s[{SC}:{SC+3}], s64 offen")
            if st < 27: w2_next()
    def w2_write(st):
        r = STB0 + 8*(st-NWS); o = (st % NWS)*8192
        l.e(f"ds_write_b128 v60, v[{r}:{r+3}] offset:{o}")
        l.e(f"ds_write_b128 v60, v[{r+4}:{r+7}] offset:{o+1024}")
    w2_setup()
    kd = L("kvdone")
    l.e("s_cmp_eq_u32 s78, 1")
    l.e(f"s_cbranch_scc1 {kd}")
    kv_flag_addr(l)
    poll(l, [(12, "s65", 13, 1, False)])
    kv_dma(l)
    l.label(kd)
    w2_ring()
    l.e(f"s_waitcnt vmcnt({2*NWS})")
    SL(2)
    l.e("s_barrier")
    w2_stash()
    srd(l, SE, P_WS, H_BYTES, add=WS_H)
    l.e("v_lshrrev_b32 v5, 1, v2")
    l.e("v_and_b32 v5, 15, v5")
    l.e("v_lshlrev_b32 v5, 2, v5")
    l.e("v_and_b32 v6, 1, v2")
    l.e("v_add_u32 v5, v5, v6")
    l.e("v_lshlrev_b32 v11, 7, v5")
    l.e(f"s_lshr_b32 s64, s{TT}, 1")
    l.e("s_lshl_b32 s64, s64, 6")
    l.e(f"s_and_b32 s65, s{TT}, 1")
    l.e("s_lshl_b32 s65, s65, 1")
    l.e("s_add_u32 s64, s64, s65")
    l.e("s_lshl_b32 s64, s64, 7")
    l.e(f"s_add_u32 s70, s64, {WS_HF}")
    l.e("v_lshlrev_b32 v12, 4, v2")
    l.e(f"s_lshl_b32 s68, s{TT}, 2")
    l.e(f"s_lshl_b32 s64, s{CW}, 1")
    l.e("s_add_u32 s68, s68, s64")
    l.e("s_mul_i32 s66, s68, 57344")
    l.e(f"s_mov_b32 s71, s{O2}")
    l.e(f"s_lshl_b32 s68, s{O2}, 11")
    l.e("s_add_u32 s68, s68, s66")
    l.e(f"s_lshl_b32 s69, s{CW}, 12")
    poll(l, [(11, "s70", 14, 1, True)])
    SL(3)
    def hslot(st):
        k = st % NHS
        return HSA + k*8192 if k < NH1 else (k-NH1)*8192
    def issue_h(st):
        l.e(f"s_add_u32 m0, s69, {hslot(st)}")
        l.e("s_add_u32 s64, s68, 1024")
        l.e(f"buffer_load_dwordx4 v12, s[{SE}:{SE+3}], s68 offen{HSC} lds")
        l.e("s_add_u32 m0, m0, 1024")
        l.e("s_add_u32 s65, s68, 57344")
        l.e(f"buffer_load_dwordx4 v12, s[{SE}:{SE+3}], s64 offen{HSC} lds")
        l.e("s_add_u32 m0, m0, 1024")
        l.e("s_add_u32 s64, s64, 57344")
        l.e(f"buffer_load_dwordx4 v12, s[{SE}:{SE+3}], s65 offen{HSC} lds")
        l.e("s_add_u32 m0, m0, 1024")
        l.e("s_add_u32 s68, s68, 2048")
        l.e(f"buffer_load_dwordx4 v12, s[{SE}:{SE+3}], s64 offen{HSC} lds")
        l.e("s_add_u32 s71, s71, 1")
        l.e("s_cmp_eq_u32 s71, 28")
        l.e("s_cselect_b32 s68, s66, s68")
        l.e("s_cselect_b32 s71, 0, s71")
    for st in range(NH1): issue_h(st)
    l.e(f"s_waitcnt vmcnt({4*(NH1-2)})")
    l.e("s_barrier")
    SL(4)
    for st in range(NH1, NHS): issue_h(st)
    issued = NHS - 1
    for j in range(28):
        if j + 2 <= 27:
            l.e(f"s_waitcnt vmcnt({4*(issued - (j+2))}) lgkmcnt({2 if j + NWS - 1 <= 27 else 0})")
        l.e("s_barrier")
        if j + NHS <= 27:
            issue_h(j + NHS); issued = j + NHS
        if j + NWS <= 27:
            w2_write(j + NWS)
        if j == 2:
            ny = L("noyf")
            l.e(f"s_cmp_eq_u32 s{CW}, 0")
            l.e(f"s_cbranch_scc0 {ny}")
            l.e("s_lshl_b32 s64, s2, 7")
            l.e(f"s_add_u32 s64, s64, {WS_YF}")
            flag_store(l, 14, 13, "s64", track=False)
            l.label(ny)
            SL(5)
        if j == 11: SL(6)
        if j == 19: SL(7)
    ne = L("noe")
    l.e("s_cmp_eq_u32 s2, 0")
    l.e(f"s_cbranch_scc0 {ne}")
    l.e(f"s_cmp_eq_u32 s{CW}, 0")
    l.e(f"s_cbranch_scc0 {ne}")
    l.e("v_lshlrev_b32 v11, 7, v2")
    for j in range(4): l.e(f"s_mov_b32 s{64+j}, {WS_PF + 8192*j}")
    poll(l, [(11, f"s{64+j}", 14+j, 1, True) for j in range(4)])
    l.e(f"s_mov_b32 s64, {WS_E}")
    flag_store(l, 13, 14, "s64")
    l.label(ne)
    SL(8)
    if PROF and not DIAG: S_.flush(l, 9, P_WS, 3)
    l.e("s_endpgm")

    l.label("L_wload")
    l.vm = list(vm_save)
    np_ = L("nopre")
    l.e(f"s_cmp_eq_u32 s{CW}, 3")
    l.e(f"s_cbranch_scc0 {np_}")
    l.e("s_getpc_b64 s[64:65]")
    l.label("L_pc")
    l.e("v_lshlrev_b32 v12, 7, v2")
    l.e("s_sub_u32 s64, s64, L_pc-" + KN)
    l.e("s_subb_u32 s65, s65, 0")
    for j in range(CODE_LINES):
        l.e(f"v_add_u32 v13, {8192*j}, v12")
        l.e(f"v_min_u32 v13, L_code_end-{KN}-4, v13")
        l.e("global_load_dword v178, v13, s[64:65]")
    l.label(np_)
    l.e(f"s_sub_u32 s67, s{CW}, 2")
    VOW = 48
    for i in range(7):
        l.e(f"v_add_u32 v12, {64*i}, v2")
        l.e("v_mul_u32_u24 v13, 4682, v12")
        l.e("v_lshrrev_b32 v13, 16, v13")
        l.e("v_mul_u32_u24 v14, 14, v13")
        l.e("v_sub_u32 v14, v12, v14")
        l.e("v_and_b32 v15, 0x13, v13")
        l.e("v_and_b32 v12, 4, v13")
        l.e("v_lshl_or_b32 v15, v12, 1, v15")
        l.e("v_and_b32 v12, 8, v13")
        l.e("v_lshrrev_b32 v12, 1, v12")
        l.e("v_or_b32 v15, v15, v12")
        l.e("v_mul_u32_u24 v15, 3584, v15")
        l.e(f"v_lshl_add_u32 v{VOW+i}, v14, 4, v15")
    l.e("s_mul_i32 s66, s67, 114688")
    l.e(f"s_mul_i32 s68, s{FT}, 224")
    l.e("s_add_u32 s66, s66, s68")
    l.e("s_mul_i32 s67, s67, 7168")
    def issue_w(s, D):
        l.e(f"s_add_u32 s68, s66, {s*64*3584}")
        l.e(f"s_add_u32 m0, s67, {SLOT0 + (s%4)*SLOTSZ + 16384}")
        for i in range(7):
            if i: l.e("s_add_u32 m0, m0, 1024")
            l.e("s_nop 0")
            l.vmem(f"buffer_load_dwordx4 v{VOW+i}, s[{SC}:{SC+3}], s68 offen lds", f"s{s}")
            sprinkle(i, D)
        if D:
            for d in D: l.e(d)
    g1_loader(l, issue_w, False)
    SL(1)
    w2_setup()
    w2_ring()
    SL(2)
    l.e("s_barrier")
    w2_stash()
    srd(l, SB, P_WS, 2097152, add=WS_YT)
    l.e("v_lshrrev_b32 v10, 3, v2")
    l.e("v_lshlrev_b32 v10, 12, v10")
    l.e("v_and_b32 v11, 7, v2")
    l.e("v_lshl_add_u32 v10, v11, 4, v10")
    l.e("v_and_b32 v11, 31, v2")
    l.e("v_lshlrev_b32 v11, 7, v11")
    l.e(f"s_lshl_b32 s64, s{DT}, 12")
    l.e(f"s_add_u32 s70, s64, {WS_YF}")
    l.e(f"s_sub_u32 s65, s{CW}, 2")
    l.e(f"s_lshl_b32 s73, s{DT}, 18")
    l.e(f"s_lshl_b32 s64, s{TT}, 7")
    l.e("s_add_u32 s73, s73, s64")
    l.e("s_lshl_b32 s64, s65, 17")
    l.e("s_add_u32 s73, s73, s64")
    l.e("s_lshl_b32 s64, s65, 12")
    l.e(f"s_add_u32 s69, s64, {YB}")
    l.e("s_waitcnt vmcnt(0)")
    SL(3)
    l.e("s_barrier")
    for j in range(28):
        if j == 20:
            ok = L("yok")
            l.e("s_waitcnt vmcnt(0)")
            l.e(f"v_cmp_ne_u32 vcc, s{TAG}, v14")
            l.e("s_nop 1")
            l.e(f"s_cbranch_vccz {ok}")
            poll(l, [(11, "s70", 14, 1, True)])
            l.label(ok)
            l.e("s_mov_b32 m0, s69")
            for jj in range(4):
                if jj:
                    l.e("s_add_u32 m0, m0, 1024")
                    l.e("s_add_u32 s73, s73, 32768")
                else:
                    l.e("s_nop 0")
                l.e(f"buffer_load_dwordx4 v10, s[{SB}:{SB+3}], s73 offen sc1 lds")
        if j == 27: l.e("s_waitcnt vmcnt(0)")
        if 1 <= j <= 29 - NWS: l.e(f"s_waitcnt lgkmcnt({2 if j + NWS - 1 <= 27 else 0})")
        l.e("s_barrier")
        if j + NWS <= 27:
            w2_write(j + NWS)
        if j == 14:
            l.e(f"buffer_load_dword v14, v11, s[{FL}:{FL+3}], s70 offen sc1")
    SL(8)
    if PROF and not DIAG: S_.flush(l, 9, P_WS, 3)
    l.label("L_end")
    return "\n".join(x for x in p.text().split("\n") if x.strip() != "None")

def build():
    body = gen()
    hdr = open("cdna_kernels/" + NAME + ".s.ref").read().split("\n")
    out = []
    for line in hdr:
        if line.startswith("; @launch"):
            out.append("; @launch grid=(256,1,1) block=(512,1,1) lds=163840"); continue
        if line.startswith(";"): out.append(line)
        else: break
    out.append('.amdgcn_target "amdgcn-amd-amdhsa--gfx950"')
    code, desc = kernel(KN, body, vgpr=224, sgpr=102 if PROF else 96)
    i = code.rindex("s_endpgm")
    code = code[:i] + "s_endpgm\nL_code_end:\n"
    return "\n".join(out) + "\n" + code + desc

if __name__ == "__main__":
    dst = sys.argv[1] if len(sys.argv) > 1 else "v6.s"
    open(dst, "w").write(build())
    print("wrote", dst)
```
